```python
import torch

def _softmax(x, axis=-1):
    return torch.softmax(x, dim=axis)
def _gelu(x):
    return torch.nn.functional.gelu(x, approximate="tanh")
def _silu(x):
    return torch.nn.functional.silu(x)
def _sigmoid(x):
    return torch.sigmoid(x)
def _layernorm(x, axis=-1, eps=1e-5):
    m = x.mean(dim=axis, keepdim=True)
    v = x.var(dim=axis, keepdim=True, unbiased=False)
    return (x - m) / torch.sqrt(v + eps)
def _scatter_add(tgt, idx, src, axis=0):
    return tgt.clone().index_add_(axis, idx, src)
def _segment_sum(src, seg, n):
    out = torch.zeros((n,) + src.shape[1:], dtype=src.dtype)
    return out.index_add_(0, seg, src)
def _pad(x, pw):
    flat = tuple(v for pair in reversed(pw) for v in pair)
    return torch.nn.functional.pad(x, flat)

kernel_name = 'gather_scatter__edge_featured_mpnn_gatedgcn__graph'

def setup_inputs():

    _w = (lambda a: (lambda t: t.to(torch.bfloat16) if t.is_floating_point() else t)(torch.as_tensor(a)))
    N, deg, D, De = 12500, 32, 128, max(4, 1)
    E = N * deg
    return {
        "x": _w((lambda *s: torch.randn(*s, dtype=torch.bfloat16) * 0.4)(N, D)),
        "e_attr": _w((lambda *s: torch.randn(*s, dtype=torch.bfloat16) * 0.8)(E, De)),
        "src": _w((lambda lo, hi, *s: torch.randint(lo, hi, s))(0, N, E).to(torch.int64)),
        "dst": _w((lambda lo, hi, *s: torch.randint(lo, hi, s))(0, N, E).to(torch.int64)),
        "w_a": _w((lambda *s: torch.randn(*s, dtype=torch.bfloat16) * 0.4)(D, D)),
        "w_b": _w((lambda *s: torch.randn(*s, dtype=torch.bfloat16) * 0.4)(D, D)),
        "w_c": _w((lambda *s: torch.randn(*s, dtype=torch.bfloat16) * 0.8)(De, D)),
        "w_u": _w((lambda *s: torch.randn(*s, dtype=torch.bfloat16) * 0.05)(D, D)),
        "w_v": _w((lambda *s: torch.randn(*s, dtype=torch.bfloat16) * 0.05)(D, D)),
    }

def reference(x, e_attr, src, dst, w_a, w_b, w_c, w_u, w_v):
    N, D = x.shape
    hv = x @ w_v
    g = x[dst] @ w_a + x[src] @ w_b + e_attr @ w_c
    eta = _sigmoid(g)
    denom = _segment_sum(eta, dst, N) + 1e-6
    eta_n = eta / denom[dst]
    agg = _segment_sum(eta_n * hv[src], dst, N)
    z = x @ w_u + agg
    relu_z = torch.where(z > 0, z, 0 * z)
    return x + relu_z
```

```python
import sys

NAME = "gather_scatter__edge_featured_mpnn_gatedgcn__graph"
N = 12500
E = 400000
W = 128
CH = 3125
NPB = 33
NB = 379
CAP = 80
TPW = 3
NTILES = 782
NGEMM = (NTILES + TPW - 1) // TPW
DUMMY_ROW = 12512
OFF_BH = 0
OFF_A = 0x700000
OFF_U = 0xE00000
OFF_T = 0x1200000
OFF_REC = 0x1300000
NLOG2E = 0xBFB8AA3B

out = []
def o(s=""):
    out.append(s)

def hdr():
    o("; Kernarg layout for this problem (96 bytes, ptrs only, base s[0:1]):")
    o(f"; @launch kernel=gk1_kernel grid=({W + NGEMM},1,1) block=(256,1,1) lds=4096")
    o(f"; @launch kernel=gk2_kernel grid=({2 * NB},1,1) block=(512,1,1) lds={K2_LDS}")
    o('.amdgcn_target "amdgcn-amd-amdhsa--gfx950"')
    o(".text")

L_CNT = 0
L_TICKET = 256
L_OFFS = 512
L_E = L_OFFS + NPB * CAP * 4
L_SCR = L_E + NPB * CAP * 8
K2_LDS = L_SCR + 8 * 2048
assert L_E % 16 == 0 and L_SCR % 16 == 0

def srd(d, lo, hi, nbytes, add=0):
    if add:
        o(f"    s_add_u32 s{d}, s{lo}, {hex(add)}")
        o(f"    s_addc_u32 s{d+1}, s{hi}, 0")
    else:
        o(f"    s_mov_b32 s{d}, s{lo}")
        o(f"    s_mov_b32 s{d+1}, s{hi}")
    o(f"    s_mov_b32 s{d+2}, {hex(nbytes)}")
    o(f"    s_mov_b32 s{d+3}, 0x00020000")

def k1():
    o(".globl gk1_kernel")
    o(".p2align 8")
    o(".type gk1_kernel,@function")
    o("gk1_kernel:")
    o(f"    s_cmp_ge_u32 s2, {W + NGEMM}")
    o("    s_cbranch_scc1 K1_done")
    o("    s_load_dwordx16 s[4:19], s[0:1], 0")
    o("    s_load_dwordx8 s[20:27], s[0:1], 64")
    o(f"    s_cmp_ge_u32 s2, {W}")
    o("    s_cbranch_scc1 K1_gemm")
    NI = 13
    o("    v_lshlrev_b32 v1, 3, v0")
    o("    v_lshlrev_b32 v2, 2, v0")
    o("    v_mov_b32 v4, 0")
    o("    v_mov_b32 v5, 0")
    o("    ds_write_b64 v1, v[4:5]")
    o(f"    s_mul_i32 s3, s2, {CH * 4}")
    o("    s_lshl_b32 s28, s3, 1")
    o("    s_waitcnt lgkmcnt(0)")
    o("    s_add_u32 s32, s10, s3")
    o("    s_addc_u32 s33, s11, 0")
    o(f"    s_mov_b32 s34, {CH * 4}")
    o("    s_mov_b32 s35, 0x00020000")
    o("    s_add_u32 s36, s8, s3")
    o("    s_addc_u32 s37, s9, 0")
    o(f"    s_mov_b32 s38, {CH * 4}")
    o("    s_mov_b32 s39, 0x00020000")
    o("    s_add_u32 s40, s6, s28")
    o("    s_addc_u32 s41, s7, 0")
    o(f"    s_mov_b32 s42, {CH * 8}")
    o("    s_mov_b32 s43, 0x00020000")
    o(f"    s_mul_i32 s29, s2, {CH * 12}")
    o(f"    s_add_u32 s29, s29, {hex(OFF_REC)}")
    o("    s_add_u32 s44, s26, s29")
    o("    s_addc_u32 s45, s27, 0")
    o(f"    s_mov_b32 s46, {CH * 12}")
    o("    s_mov_b32 s47, 0x00020000")
    srd(48, 26, 27, NB * W * 4, OFF_T)
    srd(52, 26, 27, (DUMMY_ROW + 1) * 512, OFF_BH)
    R = lambda i: 16 + 4 * i
    for i in range(NI):
        o(f"    s_movk_i32 s{56 + i}, {i * 1024}")
    for i in range(NI):
        o(f"    s_movk_i32 s{72 + i}, {i * 2048}")
    for i in range(NI):
        o(f"    buffer_load_dword v{80 + i}, v2, s[32:35], s{56 + i} offen")
    for i in range(NI):
        o(f"    buffer_load_dword v{96 + i}, v2, s[36:39], s{56 + i} offen")
    for i in range(NI):
        o(f"    buffer_load_dwordx2 v[{R(i)}:{R(i) + 1}], v1, s[40:43], s{72 + i} offen")
    o("    s_cmp_lg_u32 s2, 0")
    o("    s_cbranch_scc1 K1_nodummy")
    o("    v_cmp_gt_u32 vcc, 32, v0")
    o("    s_and_saveexec_b64 s[30:31], vcc")
    o("    s_cbranch_execz K1_dummy_end")
    o("    v_lshlrev_b32 v3, 4, v0")
    o(f"    v_add_u32 v3, {DUMMY_ROW * 512}, v3")
    o("    v_mov_b32 v8, 0x4f004f00")
    o("    v_mov_b32 v9, 0x4f004f00")
    o("    v_mov_b32 v10, 0")
    o("    v_mov_b32 v11, 0")
    o("    buffer_store_dwordx4 v[8:11], v3, s[52:55], 0 offen")
    o("K1_dummy_end:")
    o("    s_mov_b64 exec, s[30:31]")
    o("K1_nodummy:")
    o("    v_mov_b32 v6, 1")
    o(f"    v_cmp_gt_u32 s[30:31], {CH - 12 * 256}, v0")
    o("    s_movk_i32 s90, 1986")
    o("    s_movk_i32 s91, 33")
    o("    s_barrier")
    o("    s_waitcnt vmcnt(13)")
    o("    s_waitcnt vmcnt(13)")
    for i in range(NI):
        d, s_, b = 80 + i, 96 + i, R(i) + 3
        o(f"    v_mul_u32_u24 v{b}, s90, v{d}")
        o(f"    v_lshrrev_b32 v{b}, 16, v{b}")
        o(f"    v_mul_u32_u24 v7, s91, v{b}")
        o(f"    v_sub_u32 v7, v{d}, v7")
        o(f"    v_lshl_or_b32 v{R(i) + 2}, v{s_}, 9, v7")
        o(f"    v_lshlrev_b32 v{b}, 2, v{b}")
        if i == NI - 1:
            o("    s_mov_b64 exec, s[30:31]")
        o(f"    ds_add_rtn_u32 v{112 + i}, v{b}, v6")
        if i == NI - 1:
            o("    s_mov_b64 exec, -1")
    o("    s_waitcnt lgkmcnt(0)")
    o("    s_barrier")
    o("    ds_read_b64 v[8:9], v1")
    o("    v_lshrrev_b32 v12, 6, v0")
    o("    s_nop 0")
    o("    v_readfirstlane_b32 s92, v12")
    o("    s_waitcnt lgkmcnt(0)")
    o("    v_add_u32 v10, v8, v9")
    o("    v_mov_b32 v11, v10")
    o("    s_nop 1")
    for sh in (1, 2, 4, 8):
        o(f"    v_add_u32_dpp v11, v11, v11 row_shr:{sh} row_mask:0xf bank_mask:0xf bound_ctrl:0")
        o("    s_nop 1")
    o("    v_add_u32_dpp v11, v11, v11 row_bcast:15 row_mask:0xa bank_mask:0xf")
    o("    s_nop 1")
    o("    v_add_u32_dpp v11, v11, v11 row_bcast:31 row_mask:0xc bank_mask:0xf")
    o("    s_nop 1")
    o("    v_readlane_b32 s93, v11, 63")
    o("    s_lshl_b32 s94, s92, 2")
    o("    s_add_u32 s94, s94, 2048")
    o("    v_mov_b32 v13, s94")
    o("    v_mov_b32 v14, s93")
    o("    s_mov_b64 exec, 1")
    o("    ds_write_b32 v13, v14")
    o("    s_mov_b64 exec, -1")
    o("    s_waitcnt lgkmcnt(0)")
    o("    s_barrier")
    o("    v_mov_b32 v13, 2048")
    o("    ds_read_b128 v[4:7], v13")
    o("    v_sub_u32 v11, v11, v10")
    o("    s_waitcnt lgkmcnt(0)")
    o("    v_readfirstlane_b32 s93, v4")
    o("    v_readfirstlane_b32 s94, v5")
    o("    v_readfirstlane_b32 s95, v6")
    o("    s_cmp_ge_u32 s92, 1")
    o("    s_cselect_b32 s93, s93, 0")
    o("    s_cmp_ge_u32 s92, 2")
    o("    s_cselect_b32 s94, s94, 0")
    o("    s_cmp_ge_u32 s92, 3")
    o("    s_cselect_b32 s95, s95, 0")
    o("    s_add_u32 s93, s93, s94")
    o("    s_add_u32 s93, s93, s95")
    o("    v_add_u32 v4, s93, v11")
    o("    v_add_u32 v5, v4, v8")
    o("    ds_write_b64 v1, v[4:5]")
    o("    v_lshl_or_b32 v6, v4, 16, v8")
    o("    v_lshl_or_b32 v7, v5, 16, v9")
    o("    v_lshlrev_b32 v12, 10, v0")
    o("    s_lshl_b32 s94, s2, 2")
    o("    buffer_store_dword v6, v12, s[48:51], s94 offen")
    o("    buffer_store_dword v7, v12, s[48:51], s94 offen offset:512")
    o("    s_waitcnt lgkmcnt(0)")
    o("    s_barrier")
    for i in range(NI):
        o(f"    ds_read_b32 v{80 + i}, v{R(i) + 3}")
    o("    s_waitcnt vmcnt(2)")
    for i in range(NI):
        o(f"    s_waitcnt lgkmcnt({NI - 1 - i})")
        o(f"    v_add_u32 v{80 + i}, v{80 + i}, v{112 + i}")
        o(f"    v_mul_u32_u24 v{80 + i}, 12, v{80 + i}")
        if i == NI - 1:
            o("    s_mov_b64 exec, s[30:31]")
        o(f"    buffer_store_dwordx3 v[{R(i)}:{R(i) + 2}], v{80 + i}, s[44:47], 0 offen")
    o("    s_endpgm")
    o("K1_gemm:")
    o(f"    s_sub_u32 s2, s2, {W}")
    o("    v_lshrrev_b32 v1, 6, v0")
    o("    v_and_b32 v2, 15, v0")
    o("    v_bfe_u32 v3, v0, 4, 2")
    o("    v_readfirstlane_b32 s3, v1")
    o("    s_nop 3")
    o("    s_and_b32 s28, s3, 1")
    o("    s_lshr_b32 s29, s3, 1")
    o("    s_waitcnt lgkmcnt(0)")
    o("    s_cmp_eq_u32 s29, 0")
    o("    s_cselect_b32 s32, s14, s12")
    o("    s_cselect_b32 s33, s15, s13")
    o("    s_mov_b32 s34, 32768")
    o("    s_mov_b32 s35, 0x00020000")
    o("    s_cselect_b32 s36, s20, s18")
    o("    s_cselect_b32 s37, s21, s19")
    o("    s_mov_b32 s38, 32768")
    o("    s_mov_b32 s39, 0x00020000")
    srd(40, 4, 5, N * 256)
    o(f"    s_cselect_b32 s30, 0, {hex(OFF_A)}")
    o("    s_add_u32 s44, s26, s30")
    o("    s_addc_u32 s45, s27, 0")
    o(f"    s_mov_b32 s46, {hex(NTILES * 16 * 512)}")
    o("    s_mov_b32 s47, 0x00020000")
    srd(48, 26, 27, NTILES * 16 * 256, OFF_U)
    o("    s_lshl_b32 s31, s28, 7")
    o("    v_lshlrev_b32 v4, 11, v3")
    o("    v_lshl_add_u32 v4, v2, 3, v4")
    o("    v_add_u32 v4, s31, v4")
    o("    v_lshlrev_b32 v5, 8, v2")
    o("    v_lshl_add_u32 v5, v3, 4, v5")
    o("    s_lshl_b32 s31, s28, 8")
    o("    v_lshlrev_b32 v6, 11, v3")
    o("    v_lshl_add_u32 v6, v2, 4, v6")
    o("    v_add_u32 v6, s31, v6")
    o("    s_lshl_b32 s31, s28, 7")
    o("    v_lshlrev_b32 v7, 10, v3")
    o("    v_lshl_add_u32 v7, v2, 3, v7")
    o("    v_add_u32 v7, s31, v7")
    o(f"    s_mul_i32 s52, s2, {TPW}")
    o("    s_lshl_b32 s53, s52, 12")
    for s in range(4):
        o(f"    s_movk_i32 s{56 + s}, {8192 * s}")
    SL = lambda k: 16 + 16 * k
    XB = [160, 176]
    ACC = 192
    TMP = 224
    for s in range(4):
        o(f"    buffer_load_dwordx4 v[{XB[0] + 4 * s}:{XB[0] + 4 * s + 3}], v5, s[40:43], s53 offen offset:{64 * s}")
    for g in range(8):
        m, s = g >> 2, g & 3
        sr = "s[32:35]" if m == 0 else "s[36:39]"
        for i in range(8):
            r = SL(g + 1) + 2 * i
            o(f"    buffer_load_dwordx2 v[{r}:{r + 1}], v4, {sr}, s{56 + s} offen offset:{256 * i}")
    o("    s_mov_b32 s60, 0x05040100")
    o("    s_mov_b32 s61, 0x07060302")
    o(f"    s_mov_b32 s62, {hex(NLOG2E)}")
    for g in range(8):
        o(f"    s_waitcnt vmcnt({8 * (7 - g)})")
        src = SL(g + 1)
        dst = SL(g)
        for kp in range(4):
            a0, a1 = src + 4 * kp, src + 4 * kp + 1
            b0, b1 = src + 4 * kp + 2, src + 4 * kp + 3
            o(f"    v_perm_b32 v{dst + 0 + kp}, v{b0}, v{a0}, s60")
            o(f"    v_perm_b32 v{dst + 4 + kp}, v{b0}, v{a0}, s61")
            o(f"    v_perm_b32 v{dst + 8 + kp}, v{b1}, v{a1}, s60")
            o(f"    v_perm_b32 v{dst + 12 + kp}, v{b1}, v{a1}, s61")
    for t in range(TPW):
        xb = XB[t & 1]
        o(f"    s_add_u32 s54, s52, {t}")
        o(f"    s_cmp_ge_u32 s54, {NTILES}")
        o("    s_cbranch_scc1 K1_done")
        if t + 1 < TPW:
            nb = XB[(t + 1) & 1]
            o(f"    s_add_u32 s55, s53, {4096 * (t + 1)}")
            for s in range(4):
                o(f"    buffer_load_dwordx4 v[{nb + 4 * s}:{nb + 4 * s + 3}], v5, s[40:43], s55 offen offset:{64 * s}")
            o("    s_waitcnt vmcnt(4)")
        else:
            o("    s_waitcnt vmcnt(0)")
        for s in range(4):
            for m in range(2):
                for u in range(4):
                    a = ACC + 16 * m + 4 * u
                    f = SL(4 * m + s) + 4 * u
                    c = "0" if s == 0 else f"v[{a}:{a + 3}]"
                    o(f"    v_mfma_f32_16x16x32_bf16 v[{a}:{a + 3}], v[{xb + 4 * s}:{xb + 4 * s + 3}], v[{f}:{f + 3}], {c}")
        o("    s_lshl_b32 s63, s54, 13")
        o("    s_lshl_b32 s64, s54, 12")
        o("    s_nop 7")
        o("    s_cmp_eq_u32 s29, 0")
        o(f"    s_cbranch_scc0 K1_ep_au{t}")
        for j in range(4):
            tb = TMP + 4 * j
            for u in range(4):
                o(f"    v_mul_f32 v{ACC + 4 * u + j}, s62, v{ACC + 4 * u + j}")
            o(f"    v_cvt_pk_bf16_f32 v{tb}, v{ACC + j}, v{ACC + 4 + j}")
            o(f"    v_cvt_pk_bf16_f32 v{tb + 1}, v{ACC + 8 + j}, v{ACC + 12 + j}")
            o(f"    v_cvt_pk_bf16_f32 v{tb + 2}, v{ACC + 16 + j}, v{ACC + 20 + j}")
            o(f"    v_cvt_pk_bf16_f32 v{tb + 3}, v{ACC + 24 + j}, v{ACC + 28 + j}")
            o(f"    buffer_store_dwordx4 v[{tb}:{tb + 3}], v6, s[44:47], s63 offen offset:{512 * j}")
        o(f"    s_branch K1_ep_end{t}")
        o(f"K1_ep_au{t}:")
        for j in range(4):
            tb = TMP + 4 * j
            for u in range(4):
                o(f"    v_mul_f32 v{tb + u}, s62, v{ACC + 4 * u + j}")
            o(f"    v_cvt_pk_bf16_f32 v{240 + 2 * j}, v{ACC + 16 + j}, v{ACC + 20 + j}")
            o(f"    v_cvt_pk_bf16_f32 v{241 + 2 * j}, v{ACC + 24 + j}, v{ACC + 28 + j}")
            o(f"    buffer_store_dwordx4 v[{tb}:{tb + 3}], v6, s[44:47], s63 offen offset:{512 * j}")
            o(f"    buffer_store_dwordx2 v[{240 + 2 * j}:{241 + 2 * j}], v7, s[48:51], s64 offen offset:{256 * j}")
        o(f"K1_ep_end{t}:")
        if t + 1 < TPW:
            o("    s_waitcnt vmcnt(0)")
    o("K1_done:")
    o("    s_endpgm")

V_L = 0
V_E = 16
V_OFF = 32
V_G = 36
V_H = 40
V_S = 44
V_WC = 50
V_A = 54
V_NUM = 58
V_DEN = 62
V_LOFF = 66
V_OADDR = 67
V_EADDR = 68
V_U = 69
V_X = 70
V_CNT = 71
V_TK = 72
V_FOFF = 73
V_OB = 74
V_EB = 75
V_SCRW = 76
V_SCRR = 77
V_ONE = 78
V_TKA = 79
K2_VGPR = 80

def step(s):
    L = V_L + 4 * s
    Ee = V_E + 4 * s
    G, H = V_G, V_H
    o(f"    v_mfma_f32_16x16x32_bf16 v[{G}:{G+3}], v[{V_S+2}:{V_S+5}], v[{L}:{L+3}], v[{V_A}:{V_A+3}]")
    o(f"    v_mfma_f32_16x16x32_bf16 v[{G}:{G+3}], v[{Ee}:{Ee+3}], v[{V_WC}:{V_WC+3}], v[{G}:{G+3}]")
    o(f"    v_mfma_f32_16x16x32_bf16 v[{H}:{H+3}], v[{V_S}:{V_S+3}], v[{L}:{L+3}], 0")
    o("    s_nop 6")
    for t in range(4):
        o(f"    v_exp_f32 v{G+t}, v{G+t}")
    for t in range(4):
        o(f"    v_add_f32 v{G+t}, 1.0, v{G+t}")
    for t in range(4):
        o(f"    v_rcp_f32 v{G+t}, v{G+t}")
    for t in range(4):
        o(f"    v_fmac_f32 v{V_NUM+t}, v{G+t}, v{H+t}")
    for t in range(4):
        o(f"    v_add_f32 v{V_DEN+t}, v{V_DEN+t}, v{G+t}")

def chunk_reads():
    o(f"    ds_read_b128 v[{V_OFF}:{V_OFF+3}], v{V_OADDR}")
    o("    s_mov_b64 exec, s[40:41]")
    for s in range(4):
        o(f"    ds_read2_b64 v[{V_E+4*s}:{V_E+4*s+3}], v{V_EADDR} offset0:{4*s} offset1:{4*s}")
    o("    s_mov_b64 exec, -1")
    o("    s_waitcnt lgkmcnt(4)")
    for s in range(4):
        o(f"    v_add_u32 v{V_OFF+s}, v{V_OFF+s}, v{V_LOFF}")

def process(tag, sn):
    o(f"K2_loop{tag}:")
    o(f"    s_cmp_lt_u32 s{sn}, 4")
    o(f"    s_cbranch_scc1 K2_tail{tag}")
    chunk_reads()
    for s in range(4):
        o(f"    buffer_load_dwordx4 v[{V_L+4*s}:{V_L+4*s+3}], v{V_OFF+s}, s[24:27], 0 offen")
    o(f"    v_add_u32 v{V_OADDR}, 64, v{V_OADDR}")
    o(f"    v_add_u32 v{V_EADDR}, 128, v{V_EADDR}")
    o(f"    s_sub_u32 s{sn}, s{sn}, 4")
    for s in range(4):
        if s == 0:
            o("    s_waitcnt vmcnt(3) lgkmcnt(0)")
        else:
            o(f"    s_waitcnt vmcnt({3 - s})")
        step(s)
    o(f"    s_branch K2_loop{tag}")
    o(f"K2_tail{tag}:")
    o(f"    s_cmp_eq_u32 s{sn}, 0")
    o(f"    s_cbranch_scc1 K2_pdone{tag}")
    chunk_reads()
    for s in range(3):
        o(f"    buffer_load_dwordx4 v[{V_L+4*s}:{V_L+4*s+3}], v{V_OFF+s}, s[24:27], 0 offen")
        if s < 2:
            o(f"    s_cmp_eq_u32 s{sn}, {s + 1}")
            o(f"    s_cbranch_scc1 K2_tl{tag}")
    o(f"K2_tl{tag}:")
    o("    s_waitcnt vmcnt(0) lgkmcnt(0)")
    for s in range(3):
        step(s)
        if s < 2:
            o(f"    s_cmp_eq_u32 s{sn}, {s + 1}")
            o(f"    s_cbranch_scc1 K2_pdone{tag}")
    o(f"K2_pdone{tag}:")

def place(e0, d0, rank, t0, t1, t2):
    o(f"    v_and_b32 v{t0}, 0x1ff, v{d0}")
    o(f"    v_and_b32 v{t1}, 3, v{rank}")
    o(f"    v_bfe_u32 v{t2}, v{rank}, 2, 2")
    o(f"    v_lshl_or_b32 v{t1}, v{t1}, 2, v{t2}")
    o(f"    v_and_b32 v{t2}, 0xfffffff0, v{rank}")
    o(f"    v_or_b32 v{t1}, v{t1}, v{t2}")
    o(f"    v_mad_u32_u24 v{t1}, v{t0}, s42, v{t1}")
    o(f"    v_mad_u32_u24 v{t2}, v{t0}, s42, v{rank}")
    o(f"    v_lshlrev_b32 v{t1}, 2, v{t1}")
    o(f"    v_lshlrev_b32 v{t2}, 3, v{t2}")
    o(f"    v_and_b32 v{t0}, 0xfffffe00, v{d0}")
    o(f"    ds_write_b32 v{t1}, v{t0} offset:{L_OFFS}")
    o(f"    ds_write_b64 v{t2}, v[{e0}:{e0+1}] offset:{L_E}")

def k2():
    o(".globl gk2_kernel")
    o(".p2align 8")
    o(".type gk2_kernel,@function")
    o("gk2_kernel:")
    o(f"    s_cmp_ge_u32 s2, {2 * NB}")
    o("    s_cbranch_scc1 K2_done")
    o("    s_load_dwordx2 s[4:5], s[0:1], 0")
    o("    s_load_dwordx2 s[6:7], s[0:1], 48")
    o("    s_load_dwordx2 s[8:9], s[0:1], 72")
    o("    s_load_dwordx2 s[10:11], s[0:1], 88")
    o("    s_and_b32 s46, s2, 1")
    o("    s_lshr_b32 s47, s2, 1")
    o("    v_and_b32 v1, 63, v0")
    o("    v_lshrrev_b32 v2, 6, v0")
    o("    v_and_b32 v3, 15, v0")
    o("    v_bfe_u32 v4, v0, 4, 2")
    o("    v_readfirstlane_b32 s48, v2")
    o("    v_lshlrev_b32 v5, 4, v0")
    o("    v_mov_b32 v8, 0")
    o("    v_mov_b32 v9, 0")
    o("    v_mov_b32 v10, 0")
    o("    v_mov_b32 v11, 0")
    o(f"    v_mov_b32 v12, {hex(DUMMY_ROW * 512)}")
    o(f"    v_mov_b32 v13, {hex(DUMMY_ROW * 512)}")
    o(f"    v_mov_b32 v14, {hex(DUMMY_ROW * 512)}")
    o(f"    v_mov_b32 v15, {hex(DUMMY_ROW * 512)}")
    o("    v_cmp_gt_u32 vcc, 32, v0")
    o("    s_and_saveexec_b64 s[44:45], vcc")
    o("    ds_write_b128 v5, v[8:11]")
    o("    s_mov_b64 exec, s[44:45]")
    nb_offs = NPB * CAP * 4
    full = nb_offs // 8192
    for k in range(full):
        o(f"    ds_write_b128 v5, v[12:15] offset:{L_OFFS + 8192 * k}")
    rem = nb_offs - full * 8192
    o(f"    v_cmp_gt_u32 vcc, {rem // 16}, v0")
    o("    s_and_saveexec_b64 s[44:45], vcc")
    o(f"    ds_write_b128 v5, v[12:15] offset:{L_OFFS + 8192 * full}")
    o("    s_mov_b64 exec, s[44:45]")
    nb_e = NPB * CAP * 8
    full = nb_e // 8192
    for k in range(full):
        o(f"    ds_write_b128 v5, v[8:11] offset:{L_E + 8192 * k}")
    rem = nb_e - full * 8192
    o(f"    v_cmp_gt_u32 vcc, {rem // 16}, v0")
    o("    s_and_saveexec_b64 s[44:45], vcc")
    o(f"    ds_write_b128 v5, v[8:11] offset:{L_E + 8192 * full}")
    o("    s_mov_b64 exec, s[44:45]")
    o("    s_waitcnt lgkmcnt(0)")
    srd(12, 10, 11, NB * W * 4, OFF_T)
    srd(16, 10, 11, E * 12, OFF_REC)
    srd(20, 6, 7, 1024)
    srd(24, 10, 11, (DUMMY_ROW + 1) * 512, OFF_BH)
    srd(28, 10, 11, NTILES * 16 * 512, OFF_A)
    srd(32, 10, 11, NTILES * 16 * 256, OFF_U)
    srd(36, 4, 5, N * 256)
    srd(52, 8, 9, N * 256)
    o("    v_lshrrev_b32 v6, 2, v0")
    o("    v_lshlrev_b32 v7, 2, v6")
    o("    s_lshl_b32 s49, s47, 9")
    o("    buffer_load_dword v16, v7, s[12:15], s49 offen")
    o("    s_lshl_b32 s50, s46, 7")
    o(f"    v_lshlrev_b32 v{V_FOFF}, 3, v3")
    o(f"    v_lshl_add_u32 v{V_FOFF}, v4, 1, v{V_FOFF}")
    o(f"    v_add_u32 v{V_FOFF}, s50, v{V_FOFF}")
    for k in range(4):
        o(f"    buffer_load_ushort v{20 + k}, v{V_FOFF}, s[20:23], 0 offen offset:{256 * k}")
    o("    s_mov_b32 s40, 0x22221111")
    o("    s_mov_b32 s41, 0x88884444")
    o(f"    s_movk_i32 s42, {CAP}")
    o(f"    s_mov_b32 s43, {hex(NLOG2E)}")
    o("    s_lshl_b32 s50, s46, 8")
    o(f"    v_lshlrev_b32 v{V_LOFF}, 4, v3")
    o(f"    v_add_u32 v{V_LOFF}, s50, v{V_LOFF}")
    o(f"    v_lshlrev_b32 v{V_OB}, 4, v4")
    o(f"    v_add_u32 v{V_OB}, {L_OFFS}, v{V_OB}")
    o("    v_lshrrev_b32 v17, 2, v3")
    o(f"    v_lshlrev_b32 v{V_EB}, 3, v17")
    o(f"    v_add_u32 v{V_EB}, {L_E}, v{V_EB}")
    o("    s_lshl_b32 s50, s48, 11")
    o(f"    s_add_u32 s50, s50, {L_SCR}")
    o(f"    v_lshlrev_b32 v{V_SCRW}, 4, v1")
    o(f"    v_add_u32 v{V_SCRW}, s50, v{V_SCRW}")
    o(f"    v_lshlrev_b32 v{V_SCRR}, 4, v3")
    o(f"    v_lshl_add_u32 v{V_SCRR}, v4, 2, v{V_SCRR}")
    o(f"    v_add_u32 v{V_SCRR}, s50, v{V_SCRR}")
    o(f"    v_mov_b32 v{V_ONE}, 1")
    o(f"    v_mov_b32 v{V_TKA}, {L_TICKET}")
    for r in range(6):
        o(f"    v_mov_b32 v{V_S + r}, 0")
    o("    v_and_b32 v18, 1, v3")
    o("    v_lshlrev_b32 v18, 4, v18")
    o("    v_mov_b32 v19, 0x3f80")
    o("    v_lshlrev_b32 v19, v18, v19")
    o("    v_cmp_eq_u32 s[44:45], v4, v17")
    o("    v_and_b32 v18, 2, v3")
    o("    v_cmp_eq_u32 vcc, 0, v18")
    o("    s_and_b64 s[50:51], s[44:45], vcc")
    o("    s_andn2_b64 s[44:45], s[44:45], vcc")
    o("    s_nop 0")
    o(f"    v_cndmask_b32 v{V_S + 2}, 0, v19, s[50:51]")
    o(f"    v_cndmask_b32 v{V_S + 3}, 0, v19, s[44:45]")
    o("    s_waitcnt vmcnt(4)")
    o("    v_lshrrev_b32 v17, 16, v16")
    o("    v_and_b32 v16, 0xffff, v16")
    o("    v_and_b32 v18, 3, v0")
    o(f"    v_mul_u32_u24 v19, {CH}, v6")
    o("    v_add3_u32 v19, v19, v17, v18")
    o("    v_mul_u32_u24 v19, 12, v19")
    RB = [24, 28, 0, 4]
    RB = [24, 28, 32, 36]
    for i in range(4):
        o(f"    v_add_u32 v17, {4 * i}, v18")
        o(f"    v_cmp_gt_u32 s[{56 + 2 * i}:{57 + 2 * i}], v16, v17")
    for i in range(4):
        o(f"    s_mov_b64 exec, s[{56 + 2 * i}:{57 + 2 * i}]")
        o(f"    buffer_load_dwordx3 v[{RB[i]}:{RB[i] + 2}], v19, s[16:19], 0 offen offset:{48 * i}")
    o("    s_mov_b64 exec, -1")
    o("    s_waitcnt vmcnt(4)")
    for k in range(4):
        o(f"    v_lshlrev_b32 v{20 + k}, 16, v{20 + k}")
        o(f"    v_mul_f32 v{20 + k}, s43, v{20 + k}")
    o(f"    v_cvt_pk_bf16_f32 v{V_WC}, v20, v21")
    o(f"    v_cvt_pk_bf16_f32 v{V_WC + 1}, v22, v23")
    o(f"    v_lshlrev_b32 v8, 16, v{V_WC}")
    o(f"    v_and_b32 v9, 0xffff0000, v{V_WC}")
    o(f"    v_lshlrev_b32 v10, 16, v{V_WC + 1}")
    o(f"    v_and_b32 v11, 0xffff0000, v{V_WC + 1}")
    for k in range(4):
        o(f"    v_sub_f32 v{20 + k}, v{20 + k}, v{8 + k}")
    o(f"    v_cvt_pk_bf16_f32 v{V_WC + 2}, v20, v21")
    o(f"    v_cvt_pk_bf16_f32 v{V_WC + 3}, v22, v23")
    o("    s_barrier")
    for i in range(4):
        o(f"    s_waitcnt vmcnt({3 - i})")
        o(f"    s_mov_b64 exec, s[{56 + 2 * i}:{57 + 2 * i}]")
        o(f"    v_and_b32 v8, 0x1ff, v{RB[i] + 2}")
        o("    v_lshlrev_b32 v8, 2, v8")
        o(f"    ds_add_rtn_u32 v{RB[i] + 3}, v8, v{V_ONE} offset:{L_CNT}")
    for i in range(4):
        o(f"    s_mov_b64 exec, s[{56 + 2 * i}:{57 + 2 * i}]")
        o(f"    s_waitcnt lgkmcnt({3 - i + 2 * i})")
        o(f"    v_cmp_gt_u32 vcc, s42, v{RB[i] + 3}")
        o("    s_and_b64 exec, exec, vcc")
        place(RB[i], RB[i] + 2, RB[i] + 3, 8, 9, 10)
    o("    s_mov_b64 exec, -1")
    o("    v_add_u32 v17, 16, v18")
    o("    v_add_u32 v19, 192, v19")
    o("K2_rem:")
    o("    v_cmp_gt_u32 vcc, v16, v17")
    o("    s_and_b64 exec, exec, vcc")
    o("    s_cbranch_execz K2_rem_end")
    o("    buffer_load_dwordx3 v[24:26], v19, s[16:19], 0 offen")
    o("    s_waitcnt vmcnt(0)")
    o("    v_and_b32 v8, 0x1ff, v26")
    o("    v_lshlrev_b32 v8, 2, v8")
    o(f"    ds_add_rtn_u32 v27, v8, v{V_ONE} offset:{L_CNT}")
    o("    s_waitcnt lgkmcnt(0)")
    o("    s_mov_b64 s[44:45], exec")
    o("    v_cmp_gt_u32 vcc, s42, v27")
    o("    s_and_b64 exec, exec, vcc")
    place(24, 26, 27, 8, 9, 10)
    o("    s_mov_b64 exec, s[44:45]")
    o("    v_add_u32 v17, 4, v17")
    o("    v_add_u32 v19, 48, v19")
    o("    s_branch K2_rem")
    o("K2_rem_end:")
    o("    s_mov_b64 exec, -1")
    o("    v_lshlrev_b32 v8, 2, v1")
    o("    s_waitcnt lgkmcnt(0)")
    o("    s_barrier")
    o(f"    ds_read_b32 v{V_CNT}, v8 offset:{L_CNT}")
    o("    s_mov_b64 exec, 1")
    o(f"    ds_add_rtn_u32 v{V_TK}, v{V_TKA}, v{V_ONE}")
    o("    s_mov_b64 exec, -1")
    for r in range(16):
        o(f"    v_mov_b32 v{V_E + r}, 0")
    o(f"    s_mul_i32 s50, s47, {NPB}")
    o(f"    s_sub_u32 s51, {N}, s50")
    o(f"    s_min_u32 s51, s51, {NPB}")
    o("    s_mov_b32 s66, 0x358637bd")
    o("    s_waitcnt lgkmcnt(0)")
    o(f"    v_readfirstlane_b32 s60, v{V_TK}")
    o("K2_node:")
    o("    s_cmp_ge_u32 s60, s51")
    o("    s_cbranch_scc1 K2_done")
    o("    s_mov_b64 exec, 1")
    o(f"    ds_add_rtn_u32 v{V_TK}, v{V_TKA}, v{V_ONE}")
    o("    s_mov_b64 exec, -1")
    o("    s_add_u32 s61, s50, s60")
    o("    s_lshl_b32 s62, s61, 9")
    o("    s_lshl_b32 s63, s61, 8")
    o(f"    v_mov_b32 v{V_U}, 0")
    o(f"    v_mov_b32 v{V_X}, 0")
    o(f"    v_readlane_b32 s64, v{V_CNT}, s60")
    o(f"    buffer_load_dwordx4 v[{V_A}:{V_A+3}], v{V_LOFF}, s[28:31], s62 offen")
    o(f"    buffer_load_short_d16_hi v{V_U}, v{V_FOFF}, s[32:35], s63 offen")
    o(f"    buffer_load_short_d16_hi v{V_X}, v{V_FOFF}, s[36:39], s63 offen")
    o(f"    s_mul_i32 s65, s60, {CAP * 4}")
    o(f"    v_add_u32 v{V_OADDR}, s65, v{V_OB}")
    o("    s_lshl_b32 s65, s65, 1")
    o(f"    v_add_u32 v{V_EADDR}, s65, v{V_EB}")
    for t in range(4):
        o(f"    v_mov_b32 v{V_NUM + t}, 0")
        o(f"    v_mov_b32 v{V_DEN + t}, 0")
    o(f"    s_cmp_gt_u32 s64, {CAP}")
    o("    s_cbranch_scc1 K2_slow")
    o("    s_add_u32 s64, s64, 3")
    o("    s_lshr_b32 s64, s64, 2")
    process("f", 64)
    o("K2_fin:")
    o(f"    ds_write_b128 v{V_SCRW}, v[{V_NUM}:{V_NUM+3}]")
    o(f"    ds_write_b128 v{V_SCRW}, v[{V_DEN}:{V_DEN+3}] offset:1024")
    for k in range(4):
        o(f"    ds_read2st64_b32 v[{V_G + 2 * k}:{V_G + 2 * k + 1}], v{V_SCRR} offset0:{2 * k} offset1:{2 * k + 1}")
    o("    s_waitcnt vmcnt(0) lgkmcnt(0)")
    o(f"    v_readfirstlane_b32 s60, v{V_TK}")
    G = V_G
    o(f"    v_add_f32 v{G}, v{G}, v{G+1}")
    o(f"    v_add_f32 v{G+2}, v{G+2}, v{G+3}")
    o(f"    v_add_f32 v{G+4}, v{G+4}, v{G+5}")
    o(f"    v_add_f32 v{G+6}, v{G+6}, v{G+7}")
    o(f"    v_add_f32 v{G}, v{G}, v{G+2}")
    o(f"    v_add_f32 v{G+4}, v{G+4}, v{G+6}")
    o(f"    v_add_f32 v{G+4}, s66, v{G+4}")
    o(f"    v_rcp_f32 v{G+4}, v{G+4}")
    o("    s_nop 0")
    o(f"    v_fma_f32 v{G}, v{G}, v{G+4}, v{V_U}")
    o(f"    v_max_f32 v{G}, 0, v{G}")
    o(f"    v_add_f32 v{G}, v{G}, v{V_X}")
    o(f"    v_cvt_pk_bf16_f32 v{G}, v{G}, v{G}")
    o(f"    buffer_store_short v{G}, v{V_FOFF}, s[52:55], s63 offen")
    o("    s_branch K2_node")
    o("K2_slow:")
    o("    s_mov_b32 s68, 0")
    o(f"    v_mbcnt_lo_u32_b32 v{V_G}, -1, 0")
    o(f"    v_mbcnt_hi_u32_b32 v{V_G}, -1, v{V_G}")
    o(f"    v_mov_b32 v{V_OFF}, v{V_G}")
    o("K2_sseg:")
    o(f"    s_cmp_ge_u32 s68, {W}")
    o("    s_cbranch_scc1 K2_fin")
    o("    s_lshl_b32 s69, s68, 2")
    o("    s_add_u32 s69, s69, s49")
    o("    s_buffer_load_dword s70, s[12:15], s69")
    o("    s_waitcnt lgkmcnt(0)")
    o("    s_lshr_b32 s71, s70, 16")
    o("    s_and_b32 s70, s70, 0xffff")
    o(f"    s_mul_i32 s72, s68, {CH}")
    o("    s_add_u32 s71, s71, s72")
    o("    s_add_u32 s68, s68, 1")
    o("    s_mov_b32 s73, 0")
    o("K2_sgrp:")
    o("    s_cmp_ge_u32 s73, s70")
    o("    s_cbranch_scc1 K2_sseg")
    o(f"    v_mbcnt_lo_u32_b32 v{V_G}, -1, 0")
    o(f"    v_mbcnt_hi_u32_b32 v{V_G}, -1, v{V_G}")
    o(f"    v_add_u32 v{V_G+1}, s73, v{V_G}")
    o("    s_add_u32 s74, s71, s73")
    o(f"    v_add_u32 v{V_G+2}, s74, v{V_G}")
    o(f"    v_mul_u32_u24 v{V_G+2}, 12, v{V_G+2}")
    o(f"    v_cmp_gt_u32 vcc, s70, v{V_G+1}")
    o("    s_add_u32 s73, s73, 64")
    o(f"    v_mov_b32 v{V_L+2}, 0x1ff")
    o("    s_mov_b64 exec, vcc")
    o(f"    buffer_load_dwordx3 v[{V_L}:{V_L+2}], v{V_G+2}, s[16:19], 0 offen")
    o("    s_mov_b64 exec, -1")
    o(f"    s_mul_i32 s65, s60, {CAP * 4}")
    o(f"    v_lshlrev_b32 v{V_G+1}, 2, v{V_G}")
    o(f"    v_add_u32 v{V_G+1}, s65, v{V_G+1}")
    o(f"    v_lshlrev_b32 v{V_G+2}, 1, v{V_G+1}")
    o(f"    v_mov_b32 v{V_G+3}, {hex(DUMMY_ROW * 512)}")
    o(f"    v_mov_b32 v{V_H}, 0")
    o(f"    v_mov_b32 v{V_H+1}, 0")
    o(f"    ds_write_b32 v{V_G+1}, v{V_G+3} offset:{L_OFFS}")
    o(f"    ds_write_b64 v{V_G+2}, v[{V_H}:{V_H+1}] offset:{L_E}")
    o("    s_waitcnt vmcnt(0)")
    o(f"    v_and_b32 v{V_G+1}, 0x1ff, v{V_L+2}")
    o(f"    v_cmp_eq_u32 vcc, s60, v{V_G+1}")
    o("    s_bcnt1_i32_b64 s64, vcc")
    o("    s_cmp_eq_u32 s64, 0")
    o("    s_cbranch_scc1 K2_sgrp")
    o(f"    v_mbcnt_lo_u32_b32 v{V_L+3}, vcc_lo, 0")
    o(f"    v_mbcnt_hi_u32_b32 v{V_L+3}, vcc_hi, v{V_L+3}")
    o("    s_mov_b64 exec, vcc")
    place(V_L, V_L + 2, V_L + 3, V_G + 1, V_G + 2, V_G + 3)
    o("    s_mov_b64 exec, -1")
    o(f"    v_add_u32 v{V_OADDR}, s65, v{V_OB}")
    o("    s_lshl_b32 s65, s65, 1")
    o(f"    v_add_u32 v{V_EADDR}, s65, v{V_EB}")
    o("    s_add_u32 s64, s64, 3")
    o("    s_lshr_b32 s64, s64, 2")
    o("    s_waitcnt lgkmcnt(0)")
    process("s", 64)
    o("    s_branch K2_sgrp")
    o("K2_done:")
    o("    s_endpgm")

def desc(name, vgpr, sgpr):
    o(f".amdhsa_kernel {name}")
    o(f"  .amdhsa_next_free_vgpr {vgpr}")
    o(f"  .amdhsa_next_free_sgpr {sgpr}")
    o(f"  .amdhsa_accum_offset {(vgpr + 3) // 4 * 4}")
    o("  .amdhsa_group_segment_fixed_size 0")
    o("  .amdhsa_kernarg_size 96")
    o("  .amdhsa_user_sgpr_count 2")
    o("  .amdhsa_user_sgpr_kernarg_segment_ptr 1")
    o("  .amdhsa_system_sgpr_workgroup_id_x 1")
    o(".end_amdhsa_kernel")

hdr()
k1()
k2()
o('.section .rodata,"a"')
o(".p2align 6")
desc("gk1_kernel", 248, 102)
o(".p2align 6")
desc("gk2_kernel", K2_VGPR, 80)
path = sys.argv[1] if len(sys.argv) > 1 else f"cdna_kernels/{NAME}.s"
open(path, "w").write("\n".join(out) + "\n")
print("wrote", path, "lines", len(out), "K2 LDS", K2_LDS)
```

```python
import sys, os
FLAGS = os.environ.get("GF", "").split(",")

NAME = "gather_scatter__edge_featured_mpnn_gatedgcn__graph"
N = 12500
E = 400000
W = 128
CH = 3125
NPB = 33
NB = 379
CAP = 64
TPW = 2
NTILES = 782
NGW = (NTILES + 8 * TPW - 1) // (8 * TPW)
K1_GRID = W + 2 + 2 * NGW
DUMMY_ROW = 12512
OFF_BH = 0
OFF_FR = 0x700000
OFF_T = 0x800000
OFF_REC = 0x900000
NLOG2E = 0xBFB8AA3B

out = []
def o(s=""):
    out.append(s)

L_CNT = 0
L_TICKET = 256
L_OFFS = 512
L_E = L_OFFS + NPB * CAP * 4
L_SCR = L_E + NPB * CAP * 8
L_A = L_SCR + 8 * 1024
L_U = L_A + NPB * 128
XSTR = 272
L_X = L_U + NPB * 128
K2_LDS = L_X + NPB * XSTR
assert L_E % 16 == 0 and L_SCR % 16 == 0

def hdr():
    o("; Kernarg layout for this problem (96 bytes, ptrs only, base s[0:1]):")
    o(f"; @launch kernel=gk1_kernel grid=({K1_GRID},1,1) block=(512,1,1) lds=32768")
    o(f"; @launch kernel=gk2_kernel grid=({2 * NB},1,1) block=(512,1,1) lds={K2_LDS}")
    o('.amdgcn_target "amdgcn-amd-amdhsa--gfx950"')
    o(".text")

def srd(d, lo, hi, nbytes, add=0):
    if add:
        o(f"    s_add_u32 s{d}, s{lo}, {hex(add)}")
        o(f"    s_addc_u32 s{d+1}, s{hi}, 0")
    else:
        o(f"    s_mov_b32 s{d}, s{lo}")
        o(f"    s_mov_b32 s{d+1}, s{hi}")
    o(f"    s_mov_b32 s{d+2}, {hex(nbytes)}")
    o(f"    s_mov_b32 s{d+3}, 0x00020000")

def k1():
    o(".globl gk1_kernel")
    o(".p2align 8")
    o(".type gk1_kernel,@function")
    o("gk1_kernel:")
    o(f"    s_cmp_ge_u32 s2, {K1_GRID}")
    o("    s_cbranch_scc1 K1_done")
    o("    s_load_dwordx16 s[4:19], s[0:1], 0")
    o("    s_load_dwordx8 s[20:27], s[0:1], 64")
    o(f"    s_cmp_ge_u32 s2, {W}")
    o("    s_cbranch_scc1 K1_gemm" if "nogemm" not in FLAGS else "    s_cbranch_scc1 K1_done")
    if "nopart" in FLAGS:
        o("    s_branch K1_done")
    NI = 7
    o("    v_lshlrev_b32 v1, 3, v0")
    o("    v_lshlrev_b32 v2, 2, v0")
    o("    v_mov_b32 v4, 0")
    o("    ds_write_b32 v2, v4")
    o(f"    s_mul_i32 s3, s2, {CH * 4}")
    o("    s_lshl_b32 s28, s3, 1")
    o("    s_waitcnt lgkmcnt(0)")
    o("    s_add_u32 s32, s10, s3")
    o("    s_addc_u32 s33, s11, 0")
    o(f"    s_mov_b32 s34, {CH * 4}")
    o("    s_mov_b32 s35, 0x00020000")
    o("    s_add_u32 s36, s8, s3")
    o("    s_addc_u32 s37, s9, 0")
    o(f"    s_mov_b32 s38, {CH * 4}")
    o("    s_mov_b32 s39, 0x00020000")
    o("    s_add_u32 s40, s6, s28")
    o("    s_addc_u32 s41, s7, 0")
    o(f"    s_mov_b32 s42, {CH * 8}")
    o("    s_mov_b32 s43, 0x00020000")
    o(f"    s_mul_i32 s29, s2, {CH * 12}")
    o(f"    s_add_u32 s29, s29, {hex(OFF_REC)}")
    o("    s_add_u32 s44, s26, s29")
    o("    s_addc_u32 s45, s27, 0")
    o(f"    s_mov_b32 s46, {CH * 12}")
    o("    s_mov_b32 s47, 0x00020000")
    srd(48, 26, 27, NB * W * 4, OFF_T)
    R = lambda i: 16 + 4 * i
    for i in range(NI):
        o(f"    s_movk_i32 s{56 + i}, {i * 2048}")
    for i in range(NI):
        o(f"    s_movk_i32 s{72 + i}, {i * 4096}")
    for i in range(NI):
        o(f"    buffer_load_dword v{80 + i}, v2, s[32:35], s{56 + i} offen")
    for i in range(NI):
        o(f"    buffer_load_dword v{96 + i}, v2, s[36:39], s{56 + i} offen")
    for i in range(NI):
        o(f"    buffer_load_dwordx2 v[{R(i)}:{R(i) + 1}], v1, s[40:43], s{72 + i} offen")
    o("    v_mov_b32 v6, 1")
    o(f"    v_cmp_gt_u32 s[30:31], {CH - 6 * 512}, v0")
    o("    s_movk_i32 s90, 1986")
    o("    s_movk_i32 s91, 33")
    o("    v_lshrrev_b32 v12, 6, v0")
    o("    s_barrier")
    o("    v_readfirstlane_b32 s92, v12")
    for i in range(NI):
        d, s_, b = 80 + i, 96 + i, R(i) + 3
        o(f"    s_waitcnt vmcnt({2 * NI - 1 - i + NI})")
        o(f"    v_mul_u32_u24 v{b}, s90, v{d}")
        o(f"    v_lshrrev_b32 v{b}, 16, v{b}")
        o(f"    v_mul_u32_u24 v7, s91, v{b}")
        o(f"    v_sub_u32 v{d}, v{d}, v7")
        o(f"    v_lshlrev_b32 v{b}, 2, v{b}")
        if i == NI - 1:
            o("    s_mov_b64 exec, s[30:31]")
        o(f"    ds_add_rtn_u32 v{112 + i}, v{b}, v6")
        if i == NI - 1:
            o("    s_mov_b64 exec, -1")
    o(f"    s_waitcnt vmcnt({NI})")
    for i in range(NI):
        o(f"    v_lshl_or_b32 v{R(i) + 2}, v{96 + i}, 9, v{80 + i}")
    o("    s_waitcnt lgkmcnt(0)")
    o("    s_barrier")
    o("    ds_read_b32 v8, v2")
    o("    s_waitcnt lgkmcnt(0)")
    o("    v_mov_b32 v11, v8")
    o("    s_nop 1")
    for sh in (1, 2, 4, 8):
        o(f"    v_add_u32_dpp v11, v11, v11 row_shr:{sh} row_mask:0xf bank_mask:0xf bound_ctrl:0")
        o("    s_nop 1")
    o("    v_add_u32_dpp v11, v11, v11 row_bcast:15 row_mask:0xa bank_mask:0xf")
    o("    s_nop 1")
    o("    v_add_u32_dpp v11, v11, v11 row_bcast:31 row_mask:0xc bank_mask:0xf")
    o("    s_nop 1")
    o("    v_readlane_b32 s93, v11, 63")
    o("    s_lshl_b32 s94, s92, 2")
    o("    s_add_u32 s94, s94, 2048")
    o("    v_mov_b32 v13, s94")
    o("    v_mov_b32 v14, s93")
    o("    s_mov_b64 exec, 1")
    o("    ds_write_b32 v13, v14")
    o("    s_mov_b64 exec, -1")
    o("    s_waitcnt lgkmcnt(0)")
    o("    s_barrier")
    o("    v_and_b32 v13, 7, v0")
    o("    v_lshlrev_b32 v14, 2, v13")
    o("    ds_read_b32 v4, v14 offset:2048")
    o("    v_sub_u32 v11, v11, v8")
    o("    v_cmp_gt_u32 vcc, s92, v13")
    o("    s_waitcnt lgkmcnt(0)")
    o("    v_cndmask_b32 v4, 0, v4, vcc")
    o("    s_nop 1")
    for sh in (1, 2, 4):
        o(f"    v_add_u32_dpp v4, v4, v4 row_shr:{sh} row_mask:0xf bank_mask:0xf bound_ctrl:0")
        o("    s_nop 1")
    o("    v_readlane_b32 s93, v4, 7")
    o("    s_nop 1")
    o("    v_add_u32 v4, s93, v11")
    o("    ds_write_b32 v2, v4")
    o("    v_lshl_or_b32 v6, v4, 16, v8")
    o("    v_lshlrev_b32 v12, 9, v0")
    o("    s_lshl_b32 s94, s2, 2")
    o("    buffer_store_dword v6, v12, s[48:51], s94 offen")
    o("    s_waitcnt lgkmcnt(0)")
    o("    s_barrier")
    for i in range(NI):
        o(f"    ds_read_b32 v{80 + i}, v{R(i) + 3}")
    o("    s_waitcnt vmcnt(1)")
    for i in range(NI):
        o(f"    s_waitcnt lgkmcnt({NI - 1 - i})")
        o(f"    v_add_u32 v{80 + i}, v{80 + i}, v{112 + i}")
        o(f"    v_mul_u32_u24 v{80 + i}, 12, v{80 + i}")
        if i == NI - 1:
            o("    s_mov_b64 exec, s[30:31]")
        o(f"    buffer_store_dwordx3 v[{R(i)}:{R(i) + 2}], v{80 + i}, s[44:47], 0 offen")
    o("    s_endpgm")
    o("K1_gemm:")
    o(f"    s_sub_u32 s2, s2, {W}")
    o("    v_lshrrev_b32 v1, 6, v0")
    o("    v_and_b32 v2, 15, v0")
    o("    v_bfe_u32 v3, v0, 4, 2")
    o("    v_readfirstlane_b32 s3, v1")
    o("    v_and_b32 v8, 63, v0")
    o("    v_lshlrev_b32 v8, 4, v8")
    o("    s_and_b32 s28, s2, 1")
    o("    s_lshr_b32 s29, s3, 2")
    o("    s_and_b32 s30, s3, 3")
    o("    s_waitcnt lgkmcnt(0)")
    o("    s_cmp_lt_u32 s2, 2")
    o("    s_cselect_b32 s32, s12, s14")
    o("    s_cselect_b32 s33, s13, s15")
    o("    s_cselect_b32 s36, s18, s20")
    o("    s_cselect_b32 s37, s19, s21")
    o("    s_cmp_eq_u32 s29, 0")
    o("    s_cselect_b32 s32, s32, s36")
    o("    s_cselect_b32 s33, s33, s37")
    o("    s_mov_b32 s34, 32768")
    o("    s_mov_b32 s35, 0x00020000")
    srd(40, 4, 5, N * 256)
    srd(44, 26, 27, (DUMMY_ROW + 1) * 512, OFF_BH)
    srd(48, 26, 27, 65536, OFF_FR)
    o("    s_lshl_b32 s31, s28, 7")
    o("    v_lshlrev_b32 v4, 11, v3")
    o("    v_lshl_add_u32 v4, v2, 3, v4")
    o("    v_add_u32 v4, s31, v4")
    o("    s_lshl_b32 s31, s30, 13")
    WT = 208
    for i in range(8):
        o(f"    buffer_load_dwordx2 v[{WT + 2 * i}:{WT + 2 * i + 1}], v4, s[32:35], s31 offen offset:{256 * i}")
    o("    v_lshlrev_b32 v5, 8, v2")
    o("    v_lshl_add_u32 v5, v3, 4, v5")
    o("    s_sub_u32 s52, s2, 2")
    o("    s_lshr_b32 s52, s52, 1")
    o(f"    s_mul_i32 s52, s52, {8 * TPW}")
    o(f"    s_mul_i32 s53, s3, {TPW}")
    o("    s_add_u32 s52, s52, s53")
    o("    s_lshl_b32 s53, s52, 12")
    XB = [144, 160]
    ACC = 176
    o("    s_cmp_lt_u32 s2, 2")
    o("    s_cbranch_scc1 K1_nox")
    for t in range(TPW):
        o(f"    s_add_u32 s55, s53, {4096 * t}")
        for s in range(4):
            o(f"    buffer_load_dwordx4 v[{XB[t] + 4 * s}:{XB[t] + 4 * s + 3}], v5, s[40:43], s55 offen offset:{64 * s}")
    o("K1_nox:")
    o("    s_mov_b32 s60, 0x05040100")
    o("    s_mov_b32 s61, 0x07060302")
    o(f"    s_mov_b32 s62, {hex(NLOG2E)}")
    o("    s_mov_b32 s64, 0xffff0000")
    o("    s_brev_b32 s65, 1")
    o("    s_lshl_b32 s31, s28, 8")
    o("    v_lshlrev_b32 v6, 11, v3")
    o("    v_lshl_add_u32 v6, v2, 4, v6")
    o("    v_add_u32 v6, s31, v6")
    o("    s_cmp_lt_u32 s2, 2")
    o("    s_cbranch_scc1 K1_w0")
    o(f"    s_waitcnt vmcnt({4 * TPW})")
    o("    s_branch K1_w1")
    o("K1_w0:")
    o("    s_waitcnt vmcnt(0)")
    o("K1_w1:")
    FD = 224
    for kp in range(4):
        a0, a1 = WT + 4 * kp, WT + 4 * kp + 1
        b0, b1 = WT + 4 * kp + 2, WT + 4 * kp + 3
        o(f"    v_perm_b32 v{FD + 0 + kp}, v{b0}, v{a0}, s60")
        o(f"    v_perm_b32 v{FD + 4 + kp}, v{b0}, v{a0}, s61")
        o(f"    v_perm_b32 v{FD + 8 + kp}, v{b1}, v{a1}, s60")
        o(f"    v_perm_b32 v{FD + 12 + kp}, v{b1}, v{a1}, s61")
    o("    s_cmp_lt_u32 s2, 2")
    o("    s_cbranch_scc0 K1_g2")
    o("    s_lshl_b32 s54, s29, 1")
    o("    s_add_u32 s54, s54, s28")
    o("    s_lshl_b32 s54, s54, 14")
    o("    s_lshl_b32 s55, s30, 10")
    o("    s_add_u32 s54, s54, s55")
    for u in range(4):
        o(f"    s_add_u32 s55, s54, {4096 * u}")
        o(f"    buffer_store_dwordx4 v[{FD + 4 * u}:{FD + 4 * u + 3}], v8, s[48:51], s55 offen")
    o("    s_cmp_lg_u32 s2, 0")
    o("    s_cbranch_scc1 K1_done")
    o("    v_cmp_gt_u32 vcc, 32, v0")
    o("    s_and_saveexec_b64 s[30:31], vcc")
    o("    s_cbranch_execz K1_done")
    o("    v_lshlrev_b32 v3, 4, v0")
    o(f"    v_add_u32 v3, {DUMMY_ROW * 512}, v3")
    o("    v_mov_b32 v8, 0x4f00")
    o("    v_mov_b32 v9, 0x4f00")
    o("    v_mov_b32 v10, 0x4f00")
    o("    v_mov_b32 v11, 0x4f00")
    o("    buffer_store_dwordx4 v[8:11], v3, s[44:47], 0 offen")
    o("    s_endpgm")
    o("K1_g2:")
    o("    s_lshl_b32 s54, s3, 12")
    o("    v_add_u32 v9, s54, v8")
    for u in range(4):
        o(f"    ds_write_b128 v9, v[{FD + 4 * u}:{FD + 4 * u + 3}] offset:{1024 * u}")
    o("    s_waitcnt lgkmcnt(0)")
    o("    s_barrier")
    for g in range(8):
        for u in range(4):
            r = 16 + 16 * g + 4 * u
            o(f"    ds_read_b128 v[{r}:{r + 3}], v8 offset:{4096 * g + 1024 * u}")
    TMP = [208, 224]
    for t in range(TPW):
        xb = XB[t]
        o(f"    s_add_u32 s54, s52, {t}")
        o(f"    s_cmp_ge_u32 s54, {NTILES}")
        o("    s_cbranch_scc1 K1_done")
        o(f"    s_waitcnt vmcnt({4 * (TPW - 1 - t) + 4 * t})")
        for s in range(4):
            for m in range(2):
                if t == 0:
                    g = 4 * m + s
                    o(f"    s_waitcnt lgkmcnt({min(15, 32 - 4 * (g + 1))})")
                for u in range(4):
                    a = ACC + 16 * m + 4 * u
                    f = 16 + 16 * (4 * m + s) + 4 * u
                    c = "0" if s == 0 else f"v[{a}:{a + 3}]"
                    o(f"    v_mfma_f32_16x16x32_bf16 v[{a}:{a + 3}], v[{xb + 4 * s}:{xb + 4 * s + 3}], v[{f}:{f + 3}], {c}")
        o("    s_lshl_b32 s63, s54, 13")
        o("    s_nop 7")
        for j in range(4):
            tb = TMP[t] + 4 * j
            for u in range(4):
                o(f"    v_mul_f32 v{ACC + 4 * u + j}, s62, v{ACC + 4 * u + j}")
            o(f"    v_cvt_pk_bf16_f32 v10, v{ACC + j}, v{ACC + 4 + j}")
            o(f"    v_cvt_pk_bf16_f32 v12, v{ACC + 8 + j}, v{ACC + 12 + j}")
            o("    v_lshrrev_b32 v11, 16, v10")
            o("    v_and_b32 v10, 0xffff, v10")
            o("    v_lshrrev_b32 v13, 16, v12")
            o("    v_and_b32 v12, 0xffff, v12")
            for u in range(4):
                h = ACC + 16 + 4 * u + j
                b = 10 + u
                o(f"    v_and_b32 v14, 0x7fffffff, v{h}")
                o("    v_add_u32 v14, 0x8000, v14")
                o(f"    v_sub_u32 v14, v14, v{b} clamp")
                o(f"    v_and_or_b32 v14, v14, s64, v{b}")
                o(f"    v_and_or_b32 v{tb + u}, v{h}, s65, v14")
            o(f"    buffer_store_dwordx4 v[{tb}:{tb + 3}], v6, s[44:47], s63 offen offset:{512 * j}")
    o("K1_done:")
    o("    s_endpgm")

V_L = 0
V_E = 16
V_OFF = 24
V_G = 28
V_S = 36
V_WC = 40
V_A = 42
V_NUM = 46
V_DEN = 50
V_LOFF = 54
V_OADDR = 55
V_EADDR = 56
V_CNT = 57
V_TK = 58
V_FOFF = 59
V_OB = 60
V_EB = 61
V_SCRW = 62
V_SCRR = 63
V_AN = 64
V_T0 = 66
V_T1 = 67
K2_VGPR = 72
S_ONE = 56

def M1(s, g):
    if "nomfma" in FLAGS: return
    L = V_L + 4 * s
    G = V_G + 4 * g
    o(f"    v_mfma_f32_16x16x32_bf16 v[{G}:{G+3}], v[{V_S}:{V_S+3}], v[{L}:{L+3}], v[{V_A}:{V_A+3}]")

def M2(s, g):
    if "nomfma" in FLAGS: return
    Ee = V_E + 2 * s
    G = V_G + 4 * g
    o(f"    v_mfma_f32_16x16x16_bf16 v[{G}:{G+3}], v[{Ee}:{Ee+1}], v[{V_WC}:{V_WC+1}], v[{G}:{G+3}]")

def V(s, g):
    if "novalu" in FLAGS: return
    L = V_L + 4 * s
    G = V_G + 4 * g
    for t in range(4):
        o(f"    v_exp_f32 v{G+t}, v{G+t}")
    for t in (0, 2):
        o(f"    v_pk_add_f32 v[{G+t}:{G+t+1}], v[{G+t}:{G+t+1}], s[{S_ONE}:{S_ONE+1}]")
    for t in range(4):
        o(f"    v_rcp_f32 v{G+t}, v{G+t}")
    for t in (0, 2):
        o(f"    v_pk_fma_f32 v[{V_NUM+t}:{V_NUM+t+1}], v[{G+t}:{G+t+1}], v[{L+t}:{L+t+1}], v[{V_NUM+t}:{V_NUM+t+1}]")
    for t in (0, 2):
        o(f"    v_pk_add_f32 v[{V_DEN+t}:{V_DEN+t+1}], v[{V_DEN+t}:{V_DEN+t+1}], v[{G+t}:{G+t+1}]")

def I(s):
    if s == 0:
        o("    s_waitcnt lgkmcnt(0)")
    o(f"    v_add_u32 v{V_OFF+s}, v{V_OFF+s}, v{V_LOFF}")
    o("    s_mov_b64 exec, s[40:41]")
    o(f"    ds_read_b64 v[{V_E+2*s}:{V_E+2*s+1}], v{V_EADDR} offset:{32*s}")
    o("    s_mov_b64 exec, -1")
    if "noload" in FLAGS: return
    o(f"    buffer_load_dwordx4 v[{V_L+4*s}:{V_L+4*s+3}], v{V_OFF+s}, s[24:27], 0 offen")

def chunk_body(n, nl):
    if n == 1:
        o(f"    s_waitcnt vmcnt(3) lgkmcnt({3 + nl})")
        M1(0, 0)
        o("    s_nop 5")
        M2(0, 0)
        o("    s_nop 7")
    if n >= 2:
        o(f"    s_waitcnt vmcnt(3)")
        M1(0, 0)
        o(f"    s_waitcnt vmcnt(2) lgkmcnt({2 + nl})")
        M1(1, 1)
        o("    s_nop 4")
        M2(0, 0)
        M2(1, 1)
        o("    s_nop 6")
    for s in range(4):
        if s < n:
            V(s, s & 1)
        if s + 2 < n:
            o("    s_waitcnt vmcnt(1)")
            M1(s + 2, s & 1)
        I(s)
        if s + 2 < n:
            if s: o("    s_nop 0")
            M2(s + 2, s & 1)

def chunk_reads():
    o(f"    ds_read_b128 v[{V_OFF}:{V_OFF+3}], v{V_OADDR}")
    o("    s_mov_b64 exec, s[40:41]")
    for s in range(4):
        o(f"    ds_read_b64 v[{V_E+2*s}:{V_E+2*s+1}], v{V_EADDR} offset:{32*s}")
    o("    s_mov_b64 exec, -1")
    o("    s_waitcnt lgkmcnt(4)")
    for s in range(4):
        o(f"    v_add_u32 v{V_OFF+s}, v{V_OFF+s}, v{V_LOFF}")

def process_simple(tag, sn):
    o(f"K2_loop{tag}:")
    o(f"    s_cmp_eq_u32 s{sn}, 0")
    o(f"    s_cbranch_scc1 K2_pdone{tag}")
    chunk_reads()
    for s in range(4):
        o(f"    buffer_load_dwordx4 v[{V_L+4*s}:{V_L+4*s+3}], v{V_OFF+s}, s[24:27], 0 offen")
    o(f"    v_add_u32 v{V_OADDR}, 64, v{V_OADDR}")
    o(f"    v_add_u32 v{V_EADDR}, 128, v{V_EADDR}")
    o("    s_waitcnt vmcnt(0) lgkmcnt(0)")
    for s in range(4):
        M1(s, 0)
        o("    s_nop 5")
        M2(s, 0)
        o("    s_nop 7")
        V(s, 0)
        o(f"    s_sub_u32 s{sn}, s{sn}, 1")
        o(f"    s_cmp_eq_u32 s{sn}, 0")
        o(f"    s_cbranch_scc1 K2_pdone{tag}")
    o(f"    s_branch K2_loop{tag}")
    o(f"K2_pdone{tag}:")

def place(e0, d0, rank, t0, t1, t2):
    o(f"    v_and_b32 v{t0}, 0x1ff, v{d0}")
    o(f"    v_and_b32 v{t1}, 3, v{rank}")
    o(f"    v_bfe_u32 v{t2}, v{rank}, 2, 2")
    o(f"    v_lshl_or_b32 v{t1}, v{t1}, 2, v{t2}")
    o(f"    v_and_b32 v{t2}, 0xfffffff0, v{rank}")
    o(f"    v_or_b32 v{t1}, v{t1}, v{t2}")
    o(f"    v_mad_u32_u24 v{t1}, v{t0}, s42, v{t1}")
    o(f"    v_mad_u32_u24 v{t2}, v{t0}, s42, v{rank}")
    o(f"    v_lshlrev_b32 v{t1}, 2, v{t1}")
    o(f"    v_lshlrev_b32 v{t2}, 3, v{t2}")
    o(f"    v_and_b32 v{t0}, 0xfffffe00, v{d0}")
    o(f"    ds_write_b32 v{t1}, v{t0} offset:{L_OFFS}")
    o(f"    ds_write_b64 v{t2}, v[{e0}:{e0+1}] offset:{L_E}")

def node_addr(sreg):
    o(f"    s_mul_i32 s65, s{sreg}, {CAP * 4}")
    o(f"    v_add_u32 v{V_OADDR}, s65, v{V_OB}")
    o("    s_lshl_b32 s65, s65, 1")
    o(f"    v_add_u32 v{V_EADDR}, s65, v{V_EB}")

def read_an(sreg):
    o(f"    s_lshl_b32 s65, s{sreg}, 7")
    o("    s_add_u32 s65, s65, s75")
    o(f"    v_and_b32 v{V_AN}, 0xfffffff8, v{V_FOFF}")
    o(f"    v_add_u32 v{V_AN}, s65, v{V_AN}")
    o(f"    ds_read_b64 v[{V_AN}:{V_AN+1}], v{V_AN}")

def node_setup():
    o("    s_add_u32 s61, s50, s60")
    o("    s_lshl_b32 s63, s61, 8")
    o(f"    v_readlane_b32 s64, v{V_CNT}, s60")
    o(f"    v_lshlrev_b32 v{V_A}, 16, v{V_AN}")
    o(f"    v_and_b32 v{V_A+1}, 0xffff0000, v{V_AN}")
    o(f"    v_lshlrev_b32 v{V_A+2}, 16, v{V_AN+1}")
    o(f"    v_and_b32 v{V_A+3}, 0xffff0000, v{V_AN+1}")
    for t in range(4):
        o(f"    v_mov_b32 v{V_NUM + t}, 0")
        o(f"    v_mov_b32 v{V_DEN + t}, 0")
    o(f"    s_cmp_gt_u32 s64, {CAP}")
    o("    s_cselect_b32 s76, 1, 0")
    o("    s_cselect_b32 s64, 0, s64")
    o("    s_add_u32 s64, s64, 3")
    o("    s_lshr_b32 s64, s64, 2")

def finalize():
    G = V_G
    o("    s_lshl_b32 s65, s60, 7")
    o("    s_add_u32 s65, s65, s77")
    o(f"    s_mul_i32 s62, s60, {XSTR}")
    o(f"    s_add_u32 s62, s62, {L_X}")
    o(f"    ds_write_b128 v{V_SCRW}, v[{V_NUM}:{V_NUM+3}]")
    o(f"    ds_read2st64_b32 v[{G}:{G+1}], v{V_SCRR} offset0:0 offset1:1")
    o(f"    ds_read2st64_b32 v[{G+2}:{G+3}], v{V_SCRR} offset0:2 offset1:3")
    o(f"    ds_write_b128 v{V_SCRW}, v[{V_DEN}:{V_DEN+3}]")
    o(f"    ds_read2st64_b32 v[{G+4}:{G+5}], v{V_SCRR} offset0:0 offset1:1")
    o(f"    ds_read2st64_b32 v[{G+6}:{G+7}], v{V_SCRR} offset0:2 offset1:3")
    o(f"    v_add_u32 v{V_NUM}, s65, v{V_FOFF}")
    o(f"    v_add_u32 v{V_NUM+2}, s62, v{V_FOFF}")
    o(f"    v_mov_b32 v{V_NUM+1}, 0")
    o(f"    v_mov_b32 v{V_NUM+3}, 0")
    o(f"    ds_read_u16_d16_hi v{V_NUM+1}, v{V_NUM}")
    o(f"    ds_read_u16_d16_hi v{V_NUM+3}, v{V_NUM+2}")
    o("    s_waitcnt lgkmcnt(0)")
    o(f"    v_pk_add_f32 v[{G}:{G+1}], v[{G}:{G+1}], v[{G+2}:{G+3}]")
    o(f"    v_pk_add_f32 v[{G+4}:{G+5}], v[{G+4}:{G+5}], v[{G+6}:{G+7}]")
    o(f"    v_add_f32 v{G}, v{G}, v{G+1}")
    o(f"    v_add_f32 v{G+4}, v{G+4}, v{G+5}")
    o(f"    v_add_f32 v{G+4}, s66, v{G+4}")
    o(f"    v_rcp_f32 v{G+4}, v{G+4}")
    o("    s_nop 0")
    o(f"    v_fma_f32 v{G}, v{G}, v{G+4}, v{V_NUM+1}")
    o(f"    v_max_f32 v{G}, 0, v{G}")
    o(f"    v_add_f32 v{G}, v{G}, v{V_NUM+3}")
    o(f"    v_cvt_pk_bf16_f32 v{G}, v{G}, v{G}")
    o(f"    buffer_store_short v{G}, v{V_FOFF}, s[52:55], s63 offen")

def ticket():
    o(f"    v_mov_b32 v{V_T0}, {L_TICKET}")
    o(f"    v_mov_b32 v{V_T1}, 1")
    o("    s_mov_b64 exec, 1")
    o(f"    ds_add_rtn_u32 v{V_TK}, v{V_T0}, v{V_T1}")
    o("    s_mov_b64 exec, -1")

TL = "tl" in FLAGS
def stamp(i):
    if not TL: return
    o("    s_waitcnt lgkmcnt(0)")
    o(f"    s_memrealtime s[{82+2*i}:{83+2*i}]")
    o("    s_waitcnt lgkmcnt(0)")
def stamp_flush():
    if not TL: return
    o("    s_waitcnt vmcnt(0) lgkmcnt(0)")
    o("    s_memrealtime s[94:95]")
    o("    s_memtime s[96:97]")
    o("    s_waitcnt lgkmcnt(0)")
    srd(20, 10, 11, 0x100000, 0x4000000)
    o("    s_lshl_b32 s98, s2, 3")
    o("    s_add_u32 s98, s98, s48")
    o("    s_lshl_b32 s98, s98, 6")
    for i in range(8):
        o(f"    v_mov_b32 v{i}, s{80+2*i}")
    o("    v_mov_b32 v8, s96")
    o("    v_mov_b32 v9, 0")
    o("    v_mov_b32 v10, 0")
    o("    v_mov_b32 v11, 0")
    o("    v_mov_b32 v12, 0")
    o("    s_mov_b64 exec, 1")
    o("    buffer_store_dwordx4 v[0:3], v12, s[20:23], s98 offen")
    o("    buffer_store_dwordx4 v[4:7], v12, s[20:23], s98 offen offset:16")
    o("    buffer_store_dwordx4 v[8:11], v12, s[20:23], s98 offen offset:32")
    o("    s_mov_b64 exec, -1")

def lds_fill(base, nbytes, vdata):
    full = nbytes // 8192
    for k in range(full):
        o(f"    ds_write_b128 v10, v[{vdata}:{vdata+3}] offset:{base + 8192 * k}")
    rem = nbytes - full * 8192
    if rem:
        o(f"    v_cmp_gt_u32 vcc, {rem // 16}, v0")
        o("    s_and_saveexec_b64 s[44:45], vcc")
        o(f"    ds_write_b128 v10, v[{vdata}:{vdata+3}] offset:{base + 8192 * full}")
        o("    s_mov_b64 exec, s[44:45]")

def k2_full():
    o(".globl gk2_kernel")
    o(".p2align 8")
    o(".type gk2_kernel,@function")
    o("gk2_kernel:")
    if "k2empty" in FLAGS:
        o("    s_endpgm")
    o(f"    s_cmp_ge_u32 s2, {2 * NB}")
    o("    s_cbranch_scc1 K2_done0")
    if TL:
        o("    s_memtime s[80:81]")
        stamp(0)
    o("    s_load_dwordx2 s[4:5], s[0:1], 0")
    o("    s_load_dwordx2 s[6:7], s[0:1], 48")
    o("    s_load_dwordx2 s[8:9], s[0:1], 72")
    o("    s_load_dwordx2 s[10:11], s[0:1], 88")
    o("    s_and_b32 s46, s2, 1")
    o("    s_lshr_b32 s47, s2, 1")
    o("    v_and_b32 v1, 63, v0")
    o("    v_lshrrev_b32 v2, 6, v0")
    o("    v_and_b32 v3, 15, v0")
    o("    v_bfe_u32 v4, v0, 4, 2")
    o("    v_readfirstlane_b32 s48, v2")
    o("    v_lshrrev_b32 v6, 2, v0")
    o("    v_lshlrev_b32 v7, 2, v6")
    o("    v_lshlrev_b32 v10, 4, v0")
    o("    s_lshl_b32 s49, s47, 9")
    o(f"    s_mul_i32 s50, s47, {NPB}")
    o("    v_cmp_gt_u32 s[44:45], 16, v0")
    o("    s_lshl_b32 s59, s50, 8")
    o("    s_add_u32 s60, s59, 8192")
    o("    s_waitcnt lgkmcnt(0)")
    srd(12, 10, 11, NB * W * 4, OFF_T)
    o("    buffer_load_dword v5, v7, s[12:15], s49 offen")
    srd(36, 4, 5, N * 256)
    o("    buffer_load_dwordx4 v[32:35], v10, s[36:39], s59 offen")
    o("    s_mov_b64 exec, s[44:45]")
    o("    buffer_load_dwordx4 v[36:39], v10, s[36:39], s60 offen")
    o("    s_mov_b64 exec, -1")
    srd(28, 10, 11, 65536, OFF_FR)
    o("    s_and_b32 s56, s48, 1")
    o("    s_lshr_b32 s57, s48, 1")
    o("    s_lshl_b32 s58, s56, 1")
    o("    s_add_u32 s58, s58, s46")
    o("    s_lshl_b32 s58, s58, 2")
    o("    s_add_u32 s58, s58, s57")
    o("    s_lshl_b32 s58, s58, 12")
    o("    v_lshlrev_b32 v8, 4, v1")
    FR = 16
    for s in range(4):
        o(f"    buffer_load_dwordx4 v[{FR + 4 * s}:{FR + 4 * s + 3}], v8, s[28:31], s58 offen offset:{1024 * s}")
    srd(20, 6, 7, 1024)
    o("    s_lshl_b32 s62, s46, 7")
    o("    v_lshlrev_b32 v9, 3, v3")
    o("    v_lshl_add_u32 v9, v4, 1, v9")
    o("    v_add_u32 v9, s62, v9")
    WCR = 64
    for k in range(4):
        o(f"    buffer_load_ushort v{WCR + k}, v9, s[20:23], 0 offen offset:{256 * k}")
    for r in range(12, 16):
        o(f"    v_mov_b32 v{r}, 0")
    for r in range(68, 72):
        o(f"    v_mov_b32 v{r}, {hex(DUMMY_ROW * 512)}")
    lds_fill(0, 512, 12)
    lds_fill(L_E, NPB * CAP * 8, 12)
    lds_fill(L_OFFS, NPB * CAP * 4, 68)
    srd(16, 10, 11, E * 12, OFF_REC)
    srd(24, 10, 11, (DUMMY_ROW + 1) * 512, OFF_BH)
    srd(52, 8, 9, N * 256)
    o("    s_mov_b32 s40, 0x22221111")
    o("    s_mov_b32 s41, 0x88884444")
    o(f"    s_movk_i32 s42, {CAP}")
    o(f"    s_mov_b32 s43, {hex(NLOG2E)}")
    o("    s_cmp_eq_u32 s56, 0")
    o("    s_cselect_b32 s62, s43, 1.0")
    o(f"    s_mov_b32 s63, {L_U}")
    o(f"    s_cselect_b32 s63, {L_A}, s63")
    o("    s_lshl_b32 s64, s57, 1")
    o("    s_add_u32 s63, s63, s64")
    o("    s_waitcnt vmcnt(10)")
    stamp(1)
    o("    v_lshrrev_b32 v11, 16, v5")
    o("    v_and_b32 v5, 0xffff, v5")
    o("    v_and_b32 v2, 3, v0")
    o(f"    v_mul_u32_u24 v7, {CH}, v6")
    o("    v_add3_u32 v7, v7, v11, v2")
    o("    v_mul_u32_u24 v7, 12, v7")
    RB = [48, 52, 56, 60]
    for i in range(4):
        o(f"    v_add_u32 v11, {4 * i}, v2")
        o(f"    v_cmp_gt_u32 s[{68 + 2 * i}:{69 + 2 * i}], v5, v11")
    for i in range(4):
        o(f"    s_mov_b64 exec, s[{68 + 2 * i}:{69 + 2 * i}]")
        o(f"    buffer_load_dwordx3 v[{RB[i]}:{RB[i] + 2}], v7, s[16:19], 0 offen offset:{48 * i}")
    o("    s_mov_b64 exec, -1")
    o("    v_and_b32 v11, 0x1f0, v0")
    o("    v_add_u32 v11, v11, v10")
    o("    v_cmp_gt_u32 s[44:45], 16, v0")
    o("    v_lshlrev_b32 v8, 9, v4")
    o("    v_lshl_add_u32 v8, v3, 3, v8")
    o("    v_add_u32 v8, s63, v8")
    o(f"    v_mul_u32_u24 v9, {XSTR}, v3")
    o("    v_lshl_add_u32 v9, v4, 4, v9")
    o("    s_waitcnt vmcnt(12)")
    o(f"    ds_write_b128 v11, v[32:35] offset:{L_X}")
    o("    s_mov_b64 exec, s[44:45]")
    o(f"    ds_write_b128 v10, v[36:39] offset:{L_X + 32 * XSTR}")
    o("    s_mov_b64 exec, -1")
    o("    s_waitcnt vmcnt(4)")
    for k in range(4):
        o(f"    v_lshlrev_b32 v{WCR + k}, 16, v{WCR + k}")
        o(f"    v_mul_f32 v{WCR + k}, s43, v{WCR + k}")
    o(f"    v_cvt_pk_bf16_f32 v68, v{WCR}, v{WCR + 1}")
    o(f"    v_cvt_pk_bf16_f32 v69, v{WCR + 2}, v{WCR + 3}")
    o("    v_mov_b32 v64, 1")
    o("    s_waitcnt lgkmcnt(0)")
    o("    s_barrier")
    stamp(2)
    XA = 32
    D = 12
    def xreads(tl):
        for s in range(4):
            o(f"    ds_read_b128 v[{XA + 4 * s}:{XA + 4 * s + 3}], v9 offset:{L_X + 64 * s + 16 * XSTR * tl}")
    def tile(tl):
        for s in range(4):
            c = "0" if s == 0 else f"v[{D}:{D + 3}]"
            o(f"    v_mfma_f32_16x16x32_bf16 v[{D}:{D + 3}], v[{XA + 4 * s}:{XA + 4 * s + 3}], v[{FR + 4 * s}:{FR + 4 * s + 3}], {c}")
        if tl < 2:
            xreads(tl + 1)
            o("    s_nop 3")
        else:
            o("    s_nop 7")
        nj = 4 if tl < 2 else 1
        for j in range(nj):
            o(f"    v_mul_f32 v{D + j}, s62, v{D + j}")
        for j in range(nj):
            o(f"    v_cvt_pk_bf16_f32 v{D + j}, v{D + j}, v{D + j}")
        if tl == 2:
            o("    s_mov_b64 exec, 0xffff")
        for j in range(nj):
            o(f"    ds_write_b16 v8, v{D + j} offset:{2048 * tl + 128 * j}")
        if tl == 2:
            o("    s_mov_b64 exec, -1")
    xreads(0)
    for i in range(4):
        o(f"    s_waitcnt vmcnt({3 - i})")
        o(f"    s_mov_b64 exec, s[{68 + 2 * i}:{69 + 2 * i}]")
        o(f"    v_and_b32 v10, 0x1ff, v{RB[i] + 2}")
        o("    v_lshlrev_b32 v10, 2, v10")
        o(f"    ds_add_rtn_u32 v{RB[i] + 3}, v10, v64 offset:{L_CNT}")
    o("    s_mov_b64 exec, -1")
    o("    s_waitcnt lgkmcnt(4)")
    tile(0)
    o("    s_waitcnt lgkmcnt(8)")
    for i in range(4):
        o(f"    s_mov_b64 exec, s[{68 + 2 * i}:{69 + 2 * i}]")
        o(f"    v_cmp_gt_u32 vcc, s42, v{RB[i] + 3}")
        o("    s_and_b64 exec, exec, vcc")
        place(RB[i], RB[i] + 2, RB[i] + 3, 10, 11, 65)
    o("    s_mov_b64 exec, -1")
    o("    s_waitcnt lgkmcnt(12)")
    tile(1)
    o("    s_waitcnt lgkmcnt(4)")
    tile(2)
    stamp(3)
    o("    v_add_u32 v11, 16, v2")
    o("    v_add_u32 v7, 192, v7")
    o("K2_rem:")
    o("    v_cmp_gt_u32 vcc, v5, v11")
    o("    s_and_b64 exec, exec, vcc")
    o("    s_cbranch_execz K2_rem_end")
    o("    buffer_load_dwordx3 v[48:50], v7, s[16:19], 0 offen")
    o("    s_waitcnt vmcnt(0)")
    o("    v_and_b32 v10, 0x1ff, v50")
    o("    v_lshlrev_b32 v10, 2, v10")
    o(f"    ds_add_rtn_u32 v51, v10, v64 offset:{L_CNT}")
    o("    s_waitcnt lgkmcnt(0)")
    o("    s_mov_b64 s[44:45], exec")
    o("    v_cmp_gt_u32 vcc, s42, v51")
    o("    s_and_b64 exec, exec, vcc")
    place(48, 50, 51, 10, 12, 65)
    o("    s_mov_b64 exec, s[44:45]")
    o("    v_add_u32 v11, 4, v11")
    o("    v_add_u32 v7, 48, v7")
    o("    s_branch K2_rem")
    o("K2_rem_end:")
    o("    s_mov_b64 exec, -1")
    for k in range(2):
        o(f"    v_mov_b32 v{V_WC + k}, v{68 + k}")
    o("    s_lshl_b32 s62, s46, 7")
    o(f"    v_lshlrev_b32 v{V_FOFF}, 3, v3")
    o(f"    v_lshl_add_u32 v{V_FOFF}, v4, 1, v{V_FOFF}")
    o(f"    v_add_u32 v{V_FOFF}, s62, v{V_FOFF}")
    o(f"    s_sub_u32 s75, {L_A}, s62")
    o(f"    s_sub_u32 s77, {L_U}, s62")
    o("    s_lshl_b32 s62, s46, 8")
    o(f"    v_lshlrev_b32 v{V_LOFF}, 4, v3")
    o(f"    v_add_u32 v{V_LOFF}, s62, v{V_LOFF}")
    o(f"    v_lshlrev_b32 v{V_OB}, 4, v4")
    o(f"    v_add_u32 v{V_OB}, {L_OFFS}, v{V_OB}")
    o("    v_lshrrev_b32 v17, 2, v3")
    o(f"    v_lshlrev_b32 v{V_EB}, 3, v17")
    o(f"    v_add_u32 v{V_EB}, {L_E}, v{V_EB}")
    o("    s_lshl_b32 s62, s48, 10")
    o(f"    s_add_u32 s62, s62, {L_SCR}")
    o(f"    v_lshlrev_b32 v{V_SCRW}, 4, v1")
    o(f"    v_add_u32 v{V_SCRW}, s62, v{V_SCRW}")
    o(f"    v_lshlrev_b32 v{V_SCRR}, 4, v3")
    o(f"    v_lshl_add_u32 v{V_SCRR}, v4, 2, v{V_SCRR}")
    o(f"    v_add_u32 v{V_SCRR}, s62, v{V_SCRR}")
    o("    v_and_b32 v18, 3, v3")
    o("    v_mov_b32 v19, 0x3f80")
    o("    v_cmp_eq_u32 s[44:45], v4, v17")
    for t in range(4):
        o(f"    v_cmp_eq_u32 vcc, {t}, v18")
        o("    s_and_b64 s[62:63], s[44:45], vcc")
        o("    s_nop 0")
        o(f"    v_cndmask_b32 v{V_S + t}, 0, v19, s[62:63]")
    o("    v_lshlrev_b32 v8, 2, v1")
    o(f"    v_mov_b32 v9, {L_TICKET}")
    o("    v_mov_b32 v10, 2")
    o(f"    s_sub_u32 s51, {N}, s50")
    o(f"    s_min_u32 s51, s51, {NPB}")
    o("    s_mov_b32 s66, 0x358637bd")
    o(f"    s_mov_b32 s{S_ONE}, 1.0")
    o(f"    s_mov_b32 s{S_ONE+1}, 1.0")
    o("    s_waitcnt lgkmcnt(0)")
    o("    s_barrier")
    stamp(4)
    o(f"    ds_read_b32 v{V_CNT}, v8 offset:{L_CNT}")
    o("    s_mov_b64 exec, 1")
    o(f"    ds_add_rtn_u32 v{V_TK}, v9, v10")
    o("    s_mov_b64 exec, -1")
    for r in range(8):
        o(f"    v_mov_b32 v{V_E + r}, 0")
    o("    s_waitcnt lgkmcnt(0)")
    o(f"    v_readfirstlane_b32 s60, v{V_TK}")
    if "k2pro" in FLAGS:
        o("    s_branch K2_done")
    o("    s_nop 3")
    o("    s_add_u32 s67, s60, 1")
    o("    s_cmp_ge_u32 s60, s51")
    o("    s_cbranch_scc1 K2_slowscan")
    node_addr(60)
    read_an(60)
    chunk_reads()
    for s in range(4):
        o(f"    buffer_load_dwordx4 v[{V_L+4*s}:{V_L+4*s+3}], v{V_OFF+s}, s[24:27], 0 offen")
    o("    s_waitcnt lgkmcnt(0)")
    node_setup()
    o("K2_chunk:")
    o("    s_cmp_gt_u32 s64, 4")
    o("    s_cbranch_scc0 K2_last")
    o(f"    v_add_u32 v{V_OADDR}, 64, v{V_OADDR}")
    o(f"    v_add_u32 v{V_EADDR}, 128, v{V_EADDR}")
    o("    s_sub_u32 s64, s64, 4")
    o(f"    ds_read_b128 v[{V_OFF}:{V_OFF+3}], v{V_OADDR}")
    chunk_body(4, 1)
    o("    s_branch K2_chunk")
    o("K2_last:")
    o("    s_cmp_ge_u32 s67, s51")
    o("    s_cbranch_scc1 K2_nonext")
    node_addr(67)
    o("K2_nonext:")
    o(f"    ds_read_b128 v[{V_OFF}:{V_OFF+3}], v{V_OADDR}")
    o("    s_min_u32 s68, s67, 32")
    read_an(68)
    ticket()
    for n in (4, 3, 2, 1):
        o(f"    s_cmp_eq_u32 s64, {n}")
        o(f"    s_cbranch_scc1 K2_n{n}")
    chunk_body(0, 3)
    o("    s_branch K2_fin")
    for n in (1, 2, 3, 4):
        o(f"K2_n{n}:")
        chunk_body(n, 3)
        if n != 4:
            o("    s_branch K2_fin")
    o("K2_fin:")
    o("    s_cmp_lg_u32 s76, 0")
    o("    s_cbranch_scc1 K2_nofin")
    finalize()
    o("K2_nofin:")
    o("    s_mov_b32 s60, s67")
    o(f"    v_readfirstlane_b32 s67, v{V_TK}")
    o("    s_cmp_ge_u32 s60, s51")
    o("    s_cbranch_scc1 K2_slowscan")
    node_setup()
    o("    s_branch K2_chunk")
    o("K2_slowscan:")
    o("    s_waitcnt vmcnt(0) lgkmcnt(0)")
    o(f"    v_cmp_lt_u32 vcc, s42, v{V_CNT}")
    o("    s_cmp_eq_u64 vcc, 0")
    o("    s_cbranch_scc1 K2_done")
    o("    s_mov_b64 s[78:79], vcc")
    o("K2_snode:")
    o("    s_cmp_eq_u64 s[78:79], 0")
    o("    s_cbranch_scc1 K2_done")
    o("    s_ff1_i32_b64 s60, s[78:79]")
    o("    s_bitset0_b64 s[78:79], s60")
    o("    s_and_b32 s65, s60, 7")
    o("    s_cmp_lg_u32 s65, s48")
    o("    s_cbranch_scc1 K2_snode")
    read_an(60)
    o("    s_waitcnt lgkmcnt(0)")
    node_setup()
    o("    s_mov_b32 s68, 0")
    o("K2_sseg:")
    o(f"    s_cmp_ge_u32 s68, {W}")
    o("    s_cbranch_scc1 K2_sfin")
    o("    s_lshl_b32 s69, s68, 2")
    o("    s_add_u32 s69, s69, s49")
    o("    s_buffer_load_dword s70, s[12:15], s69")
    o("    s_waitcnt lgkmcnt(0)")
    o("    s_lshr_b32 s71, s70, 16")
    o("    s_and_b32 s70, s70, 0xffff")
    o(f"    s_mul_i32 s72, s68, {CH}")
    o("    s_add_u32 s71, s71, s72")
    o("    s_add_u32 s68, s68, 1")
    o("    s_mov_b32 s73, 0")
    o("K2_sgrp:")
    o("    s_cmp_ge_u32 s73, s70")
    o("    s_cbranch_scc1 K2_sseg")
    G = V_G
    o(f"    v_mbcnt_lo_u32_b32 v{G}, -1, 0")
    o(f"    v_mbcnt_hi_u32_b32 v{G}, -1, v{G}")
    o(f"    v_add_u32 v{G+1}, s73, v{G}")
    o("    s_add_u32 s74, s71, s73")
    o(f"    v_add_u32 v{G+2}, s74, v{G}")
    o(f"    v_mul_u32_u24 v{G+2}, 12, v{G+2}")
    o(f"    v_cmp_gt_u32 vcc, s70, v{G+1}")
    o("    s_add_u32 s73, s73, 64")
    o(f"    v_mov_b32 v{V_L+2}, 0x1ff")
    o("    s_mov_b64 exec, vcc")
    o(f"    buffer_load_dwordx3 v[{V_L}:{V_L+2}], v{G+2}, s[16:19], 0 offen")
    o("    s_mov_b64 exec, -1")
    o(f"    s_mul_i32 s65, s60, {CAP * 4}")
    o(f"    v_lshlrev_b32 v{G+1}, 2, v{G}")
    o(f"    v_add_u32 v{G+1}, s65, v{G+1}")
    o(f"    v_lshlrev_b32 v{G+2}, 1, v{G+1}")
    o(f"    v_mov_b32 v{G+3}, {hex(DUMMY_ROW * 512)}")
    o(f"    v_mov_b32 v{G+4}, 0")
    o(f"    v_mov_b32 v{G+5}, 0")
    o(f"    ds_write_b32 v{G+1}, v{G+3} offset:{L_OFFS}")
    o(f"    ds_write_b64 v{G+2}, v[{G+4}:{G+5}] offset:{L_E}")
    o("    s_waitcnt vmcnt(0)")
    o(f"    v_and_b32 v{G+1}, 0x1ff, v{V_L+2}")
    o(f"    v_cmp_eq_u32 vcc, s60, v{G+1}")
    o("    s_bcnt1_i32_b64 s64, vcc")
    o("    s_cmp_eq_u32 s64, 0")
    o("    s_cbranch_scc1 K2_sgrp")
    o(f"    v_mbcnt_lo_u32_b32 v{V_L+3}, vcc_lo, 0")
    o(f"    v_mbcnt_hi_u32_b32 v{V_L+3}, vcc_hi, v{V_L+3}")
    o("    s_mov_b64 exec, vcc")
    place(V_L, V_L + 2, V_L + 3, G + 1, G + 2, G + 3)
    o("    s_mov_b64 exec, -1")
    node_addr(60)
    o("    s_add_u32 s64, s64, 3")
    o("    s_lshr_b32 s64, s64, 2")
    o("    s_waitcnt lgkmcnt(0)")
    process_simple("s", 64)
    o("    s_branch K2_sgrp")
    o("K2_sfin:")
    finalize()
    o("    s_branch K2_snode")
    o("K2_done:")
    stamp_flush()
    o("K2_done0:")
    o("    s_endpgm")

def desc(name, vgpr, sgpr):
    o(f".amdhsa_kernel {name}")
    o(f"  .amdhsa_next_free_vgpr {vgpr}")
    o(f"  .amdhsa_next_free_sgpr {sgpr}")
    o(f"  .amdhsa_accum_offset {(vgpr + 3) // 4 * 4}")
    o("  .amdhsa_group_segment_fixed_size 0")
    o("  .amdhsa_kernarg_size 96")
    o("  .amdhsa_user_sgpr_count 2")
    o("  .amdhsa_user_sgpr_kernarg_segment_ptr 1")
    o("  .amdhsa_system_sgpr_workgroup_id_x 1")
    o(".end_amdhsa_kernel")

hdr()
k1()
k2_full()
o('.section .rodata,"a"')
o(".p2align 6")
desc("gk1_kernel", 240, 102)
o(".p2align 6")
desc("gk2_kernel", K2_VGPR, 102 if TL else 80)
path = sys.argv[1] if len(sys.argv) > 1 else f"cdna_kernels/{NAME}.s"
open(path, "w").write("\n".join(out) + "\n")
print("wrote", path, "lines", len(out), "K2 LDS", K2_LDS)
```

```python
import sys, os
FLAGS = os.environ.get("GF", "").split(",")

NAME = "gather_scatter__edge_featured_mpnn_gatedgcn__graph"
N = 12500
E = 400000
W = 128
CH = 3125
NPB = 33
NB = 379
CAP = 64
TPW = 2
NTILES = 782
NGW = (NTILES + 8 * TPW - 1) // (8 * TPW)
K1_GRID = W + 2 + 2 * NGW
DUMMY_ROW = 12512
DUMMY_OFF = (DUMMY_ROW + 1) * 512
OFF_BH = 0
OFF_FR = 0x700000
OFF_T = 0x800000
OFF_REC = 0x900000
NLOG2E = 0xBFB8AA3B

out = []
def o(s=""):
    out.append(s)

L_CNT = 0
L_TICKET = 256
L_OFFS = 512
L_E = L_OFFS + NPB * CAP * 4
L_SCR = L_E + NPB * CAP * 8
L_A = L_SCR + 8 * 1024
L_U = L_A + NPB * 128
XSTR = 272
L_X = L_U + NPB * 128
K2_LDS = L_X + NPB * XSTR
assert L_E % 16 == 0 and L_SCR % 16 == 0

def hdr():
    o("; Kernarg layout for this problem (96 bytes, ptrs only, base s[0:1]):")
    o(f"; @launch kernel=gk1_kernel grid=({K1_GRID},1,1) block=(512,1,1) lds=32768")
    o(f"; @launch kernel=gk2_kernel grid=({2 * NB},1,1) block=(512,1,1) lds={K2_LDS}")
    o('.amdgcn_target "amdgcn-amd-amdhsa--gfx950"')
    o(".text")

def srd(d, lo, hi, nbytes, add=0):
    if add:
        o(f"    s_add_u32 s{d}, s{lo}, {hex(add)}")
        o(f"    s_addc_u32 s{d+1}, s{hi}, 0")
    else:
        o(f"    s_mov_b32 s{d}, s{lo}")
        o(f"    s_mov_b32 s{d+1}, s{hi}")
    o(f"    s_mov_b32 s{d+2}, {hex(nbytes)}")
    o(f"    s_mov_b32 s{d+3}, 0x00020000")

TL1 = "tl1" in FLAGS
def st1(i):
    if not TL1: return
    o("    s_waitcnt lgkmcnt(0)")
    o(f"    s_memrealtime s[{80+2*i}:{81+2*i}]")
    o("    s_waitcnt lgkmcnt(0)")
def st1_flush():
    if not TL1: return
    o("    s_mov_b64 exec, -1")
    o("    s_waitcnt vmcnt(0) lgkmcnt(0)")
    o("    s_memrealtime s[100:101]")
    o("    s_waitcnt lgkmcnt(0)")
    srd(96, 26, 27, 0x100000, 0x4100000)
    for i in range(5):
        o(f"    v_mov_b32 v{240+i}, s{80+2*i}")
    o("    v_mov_b32 v245, s100")
    o("    v_mov_b32 v246, 0")
    o("    v_mov_b32 v247, 0")
    o("    v_lshrrev_b32 v248, 6, v0")
    o("    v_lshlrev_b32 v248, 6, v248")
    o("    s_mov_b64 exec, 1")
    o("    buffer_store_dwordx4 v[240:243], v248, s[96:99], s95 offen")
    o("    buffer_store_dwordx4 v[244:247], v248, s[96:99], s95 offen offset:16")
    o("    s_mov_b64 exec, -1")

def k1():
    o(".globl gk1_kernel")
    o(".p2align 8")
    o(".type gk1_kernel,@function")
    o("gk1_kernel:")
    o(f"    s_cmp_ge_u32 s2, {K1_GRID}")
    o("    s_cbranch_scc1 K1_done0")
    st1(0)
    o("    s_lshl_b32 s95, s2, 9")
    o("    s_load_dwordx16 s[4:19], s[0:1], 0")
    o("    s_load_dwordx8 s[20:27], s[0:1], 64")
    o(f"    s_cmp_ge_u32 s2, {W}")
    o("    s_cbranch_scc1 K1_gemm" if "nogemm" not in FLAGS else "    s_cbranch_scc1 K1_done")
    if "nopart" in FLAGS:
        o("    s_branch K1_done")
    NI = 7
    o("    v_lshlrev_b32 v1, 3, v0")
    o("    v_lshlrev_b32 v2, 2, v0")
    o("    v_mov_b32 v4, 0")
    o("    ds_write_b32 v2, v4")
    o(f"    s_mul_i32 s3, s2, {CH * 4}")
    o("    s_lshl_b32 s28, s3, 1")
    o("    s_waitcnt lgkmcnt(0)")
    o("    s_add_u32 s32, s10, s3")
    o("    s_addc_u32 s33, s11, 0")
    o(f"    s_mov_b32 s34, {CH * 4}")
    o("    s_mov_b32 s35, 0x00020000")
    o("    s_add_u32 s36, s8, s3")
    o("    s_addc_u32 s37, s9, 0")
    o(f"    s_mov_b32 s38, {CH * 4}")
    o("    s_mov_b32 s39, 0x00020000")
    o("    s_add_u32 s40, s6, s28")
    o("    s_addc_u32 s41, s7, 0")
    o(f"    s_mov_b32 s42, {CH * 8}")
    o("    s_mov_b32 s43, 0x00020000")
    o(f"    s_mul_i32 s29, s2, {CH * 12}")
    o(f"    s_add_u32 s29, s29, {hex(OFF_REC)}")
    o("    s_add_u32 s44, s26, s29")
    o("    s_addc_u32 s45, s27, 0")
    o(f"    s_mov_b32 s46, {CH * 12}")
    o("    s_mov_b32 s47, 0x00020000")
    srd(48, 26, 27, NB * W * 4, OFF_T)
    R = lambda i: 16 + 4 * i
    for i in range(NI):
        o(f"    s_movk_i32 s{56 + i}, {i * 2048}")
    for i in range(NI):
        o(f"    s_movk_i32 s{72 + i}, {i * 4096}")
    for i in range(NI):
        o(f"    buffer_load_dword v{80 + i}, v2, s[32:35], s{56 + i} offen")
    for i in range(NI):
        o(f"    buffer_load_dword v{96 + i}, v2, s[36:39], s{56 + i} offen")
    for i in range(NI):
        o(f"    buffer_load_dwordx2 v[{R(i)}:{R(i) + 1}], v1, s[40:43], s{72 + i} offen")
    o("    v_mov_b32 v6, 1")
    o(f"    v_cmp_gt_u32 s[30:31], {CH - 6 * 512}, v0")
    o("    s_movk_i32 s90, 1986")
    o("    s_movk_i32 s91, 33")
    o("    v_lshrrev_b32 v12, 6, v0")
    o("    s_barrier")
    o("    v_readfirstlane_b32 s92, v12")
    for i in range(NI):
        d, s_, b = 80 + i, 96 + i, R(i) + 3
        o(f"    s_waitcnt vmcnt({2 * NI - 1 - i + NI})")
        o(f"    v_mul_u32_u24 v{b}, s90, v{d}")
        o(f"    v_lshrrev_b32 v{b}, 16, v{b}")
        o(f"    v_mul_u32_u24 v7, s91, v{b}")
        o(f"    v_sub_u32 v{d}, v{d}, v7")
        o(f"    v_lshlrev_b32 v{b}, 2, v{b}")
        if i == NI - 1:
            o("    s_mov_b64 exec, s[30:31]")
        o(f"    ds_add_rtn_u32 v{112 + i}, v{b}, v6")
        if i == NI - 1:
            o("    s_mov_b64 exec, -1")
    st1(1)
    o(f"    s_waitcnt vmcnt({NI})")
    for i in range(NI):
        o(f"    v_lshlrev_b32 v{80 + i}, 2, v{80 + i}")
        o(f"    v_lshl_or_b32 v{R(i) + 2}, v{96 + i}, 9, v{80 + i}")
    o("    s_waitcnt lgkmcnt(0)")
    o("    s_barrier")
    st1(2)
    o("    ds_read_b32 v8, v2")
    o("    s_waitcnt lgkmcnt(0)")
    o("    v_mov_b32 v11, v8")
    o("    s_nop 1")
    for sh in (1, 2, 4, 8):
        o(f"    v_add_u32_dpp v11, v11, v11 row_shr:{sh} row_mask:0xf bank_mask:0xf bound_ctrl:0")
        o("    s_nop 1")
    o("    v_add_u32_dpp v11, v11, v11 row_bcast:15 row_mask:0xa bank_mask:0xf")
    o("    s_nop 1")
    o("    v_add_u32_dpp v11, v11, v11 row_bcast:31 row_mask:0xc bank_mask:0xf")
    o("    s_nop 1")
    o("    v_readlane_b32 s93, v11, 63")
    o("    s_lshl_b32 s94, s92, 2")
    o("    s_add_u32 s94, s94, 2048")
    o("    v_mov_b32 v13, s94")
    o("    v_mov_b32 v14, s93")
    o("    s_mov_b64 exec, 1")
    o("    ds_write_b32 v13, v14")
    o("    s_mov_b64 exec, -1")
    o("    s_waitcnt lgkmcnt(0)")
    o("    s_barrier")
    o("    v_and_b32 v13, 7, v0")
    o("    v_lshlrev_b32 v14, 2, v13")
    o("    ds_read_b32 v4, v14 offset:2048")
    o("    v_sub_u32 v11, v11, v8")
    o("    v_cmp_gt_u32 vcc, s92, v13")
    o("    s_waitcnt lgkmcnt(0)")
    o("    v_cndmask_b32 v4, 0, v4, vcc")
    o("    s_nop 1")
    for sh in (1, 2, 4):
        o(f"    v_add_u32_dpp v4, v4, v4 row_shr:{sh} row_mask:0xf bank_mask:0xf bound_ctrl:0")
        o("    s_nop 1")
    o("    v_readlane_b32 s93, v4, 7")
    o("    s_nop 1")
    o("    v_add_u32 v4, s93, v11")
    o("    ds_write_b32 v2, v4")
    o("    v_lshl_or_b32 v6, v4, 16, v8")
    o("    v_lshlrev_b32 v12, 9, v0")
    o("    s_lshl_b32 s94, s2, 2")
    o("    buffer_store_dword v6, v12, s[48:51], s94 offen")
    o("    s_waitcnt lgkmcnt(0)")
    o("    s_barrier")
    st1(3)
    for i in range(NI):
        o(f"    ds_read_b32 v{80 + i}, v{R(i) + 3}")
    o("    s_waitcnt vmcnt(1)")
    for i in range(NI):
        o(f"    s_waitcnt lgkmcnt({NI - 1 - i})")
        o(f"    v_add_u32 v{80 + i}, v{80 + i}, v{112 + i}")
        o(f"    v_mul_u32_u24 v{80 + i}, 12, v{80 + i}")
        if i == NI - 1:
            o("    s_mov_b64 exec, s[30:31]")
        o(f"    buffer_store_dwordx3 v[{R(i)}:{R(i) + 2}], v{80 + i}, s[44:47], 0 offen")
    st1(4)
    st1_flush()
    o("    s_endpgm")
    o("K1_gemm:")
    o(f"    s_sub_u32 s2, s2, {W}")
    o("    v_lshrrev_b32 v1, 6, v0")
    o("    v_and_b32 v2, 15, v0")
    o("    v_bfe_u32 v3, v0, 4, 2")
    o("    v_readfirstlane_b32 s3, v1")
    o("    v_and_b32 v8, 63, v0")
    o("    v_lshlrev_b32 v8, 4, v8")
    o("    s_and_b32 s28, s2, 1")
    o("    s_lshr_b32 s29, s3, 2")
    o("    s_and_b32 s30, s3, 3")
    o("    s_waitcnt lgkmcnt(0)")
    o("    s_cmp_lt_u32 s2, 2")
    o("    s_cselect_b32 s32, s12, s14")
    o("    s_cselect_b32 s33, s13, s15")
    o("    s_cselect_b32 s36, s18, s20")
    o("    s_cselect_b32 s37, s19, s21")
    o("    s_cmp_eq_u32 s29, 0")
    o("    s_cselect_b32 s32, s32, s36")
    o("    s_cselect_b32 s33, s33, s37")
    o("    s_mov_b32 s34, 32768")
    o("    s_mov_b32 s35, 0x00020000")
    srd(40, 4, 5, N * 256)
    srd(44, 26, 27, (DUMMY_ROW + 2) * 512, OFF_BH)
    srd(48, 26, 27, 65536, OFF_FR)
    o("    s_lshl_b32 s31, s28, 7")
    o("    v_lshlrev_b32 v4, 11, v3")
    o("    v_lshl_add_u32 v4, v2, 3, v4")
    o("    v_add_u32 v4, s31, v4")
    o("    s_lshl_b32 s31, s30, 13")
    WT = 208
    for i in range(8):
        o(f"    buffer_load_dwordx2 v[{WT + 2 * i}:{WT + 2 * i + 1}], v4, s[32:35], s31 offen offset:{256 * i}")
    o("    v_lshlrev_b32 v5, 8, v2")
    o("    v_lshl_add_u32 v5, v3, 4, v5")
    o("    s_sub_u32 s52, s2, 2")
    o("    s_lshr_b32 s52, s52, 1")
    o(f"    s_mul_i32 s52, s52, {8 * TPW}")
    o(f"    s_mul_i32 s53, s3, {TPW}")
    o("    s_add_u32 s52, s52, s53")
    o("    s_lshl_b32 s53, s52, 12")
    XB = [144, 160]
    ACC = 176
    o("    s_cmp_lt_u32 s2, 2")
    o("    s_cbranch_scc1 K1_nox")
    for t in range(TPW):
        o(f"    s_add_u32 s55, s53, {4096 * t}")
        for s in range(4):
            o(f"    buffer_load_dwordx4 v[{XB[t] + 4 * s}:{XB[t] + 4 * s + 3}], v5, s[40:43], s55 offen offset:{64 * s}")
    o("K1_nox:")
    o("    s_mov_b32 s60, 0x05040100")
    o("    s_mov_b32 s61, 0x07060302")
    o(f"    s_mov_b32 s62, {hex(NLOG2E)}")
    o("    s_mov_b32 s64, 0xffff0000")
    o("    s_brev_b32 s65, 1")
    o("    s_lshl_b32 s31, s28, 8")
    o("    v_lshlrev_b32 v6, 11, v3")
    o("    v_lshl_add_u32 v6, v2, 4, v6")
    o("    v_add_u32 v6, s31, v6")
    o("    s_cmp_lt_u32 s2, 2")
    o("    s_cbranch_scc1 K1_w0")
    o(f"    s_waitcnt vmcnt({4 * TPW})")
    o("    s_branch K1_w1")
    o("K1_w0:")
    o("    s_waitcnt vmcnt(0)")
    o("K1_w1:")
    st1(1)
    FD = 224
    for kp in range(4):
        a0, a1 = WT + 4 * kp, WT + 4 * kp + 1
        b0, b1 = WT + 4 * kp + 2, WT + 4 * kp + 3
        o(f"    v_perm_b32 v{FD + 0 + kp}, v{b0}, v{a0}, s60")
        o(f"    v_perm_b32 v{FD + 4 + kp}, v{b0}, v{a0}, s61")
        o(f"    v_perm_b32 v{FD + 8 + kp}, v{b1}, v{a1}, s60")
        o(f"    v_perm_b32 v{FD + 12 + kp}, v{b1}, v{a1}, s61")
    o("    s_cmp_lt_u32 s2, 2")
    o("    s_cbranch_scc0 K1_g2")
    o("    s_lshl_b32 s54, s29, 1")
    o("    s_add_u32 s54, s54, s28")
    o("    s_lshl_b32 s54, s54, 14")
    o("    s_lshl_b32 s55, s30, 10")
    o("    s_add_u32 s54, s54, s55")
    for u in range(4):
        o(f"    s_add_u32 s55, s54, {4096 * u}")
        o(f"    buffer_store_dwordx4 v[{FD + 4 * u}:{FD + 4 * u + 3}], v8, s[48:51], s55 offen")
    o("    s_cmp_lg_u32 s2, 0")
    o("    s_cbranch_scc1 K1_done")
    o("    v_cmp_gt_u32 vcc, 64, v0")
    o("    s_and_saveexec_b64 s[30:31], vcc")
    o("    s_cbranch_execz K1_done")
    o("    v_lshlrev_b32 v3, 4, v0")
    o(f"    v_add_u32 v3, {DUMMY_ROW * 512}, v3")
    o("    v_mov_b32 v8, 0x4f00")
    o("    v_mov_b32 v9, 0x4f00")
    o("    v_mov_b32 v10, 0x4f00")
    o("    v_mov_b32 v11, 0x4f00")
    o("    buffer_store_dwordx4 v[8:11], v3, s[44:47], 0 offen")
    o("    s_endpgm")
    o("K1_g2:")
    o("    s_lshl_b32 s54, s3, 12")
    o("    v_add_u32 v9, s54, v8")
    for u in range(4):
        o(f"    ds_write_b128 v9, v[{FD + 4 * u}:{FD + 4 * u + 3}] offset:{1024 * u}")
    o("    s_waitcnt lgkmcnt(0)")
    o("    s_barrier")
    st1(2)
    for g in range(8):
        for u in range(4):
            r = 16 + 16 * g + 4 * u
            o(f"    ds_read_b128 v[{r}:{r + 3}], v8 offset:{4096 * g + 1024 * u}")
    TMP = [208, 224]
    for t in range(TPW):
        xb = XB[t]
        o(f"    s_add_u32 s54, s52, {t}")
        o(f"    s_cmp_ge_u32 s54, {NTILES}")
        o("    s_cbranch_scc1 K1_done")
        o(f"    s_waitcnt vmcnt({4 * (TPW - 1 - t) + 4 * t})")
        for s in range(4):
            for m in range(2):
                if t == 0:
                    g = 4 * m + s
                    o(f"    s_waitcnt lgkmcnt({min(15, 32 - 4 * (g + 1))})")
                for u in range(4):
                    a = ACC + 16 * m + 4 * u
                    f = 16 + 16 * (4 * m + s) + 4 * u
                    c = "0" if s == 0 else f"v[{a}:{a + 3}]"
                    o(f"    v_mfma_f32_16x16x32_bf16 v[{a}:{a + 3}], v[{xb + 4 * s}:{xb + 4 * s + 3}], v[{f}:{f + 3}], {c}")
        o("    s_lshl_b32 s63, s54, 13")
        st1(3 + t)
        o("    s_nop 7")
        for j in range(4):
            tb = TMP[t] + 4 * j
            for u in range(4):
                o(f"    v_mul_f32 v{ACC + 4 * u + j}, s62, v{ACC + 4 * u + j}")
            o(f"    v_cvt_pk_bf16_f32 v10, v{ACC + j}, v{ACC + 4 + j}")
            o(f"    v_cvt_pk_bf16_f32 v12, v{ACC + 8 + j}, v{ACC + 12 + j}")
            o("    v_lshrrev_b32 v11, 16, v10")
            o("    v_and_b32 v10, 0xffff, v10")
            o("    v_lshrrev_b32 v13, 16, v12")
            o("    v_and_b32 v12, 0xffff, v12")
            for u in range(4):
                h = ACC + 16 + 4 * u + j
                b = 10 + u
                o(f"    v_and_b32 v14, 0x7fffffff, v{h}")
                o("    v_add_u32 v14, 0x8000, v14")
                o(f"    v_sub_u32 v14, v14, v{b} clamp")
                o(f"    v_and_or_b32 v14, v14, s64, v{b}")
                o(f"    v_and_or_b32 v{tb + u}, v{h}, s65, v14")
            o(f"    buffer_store_dwordx4 v[{tb}:{tb + 3}], v6, s[44:47], s63 offen offset:{512 * j}")
    o("K1_done:")
    st1_flush()
    o("K1_done0:")
    o("    s_endpgm")

R = 4
V_L = 0
V_E = 16
V_G = 24
V_S = 32
V_WC = 36
V_A = 38
V_NUM = 42
V_DEN = 46
V_LOFF = 50
V_OADDR = 51
V_EADDR = 52
V_CNT = 53
V_TK = 54
V_FOFF = 55
V_OB = 56
V_EB = 57
V_SCRW = 58
V_SCRR = 59
V_AN = 60
V_OFFN = 62
V_LOFFN = 63
V_T0 = 64
V_OFF4 = 68
K2_VGPR = 72
S_ONE = 56
S_CNODE = 60
S_CREM = 64
S_LREM = 67
S_FIFO = 68
S_FSH = 70
S_SKIP = 76

def M1(s, g):
    if "nomfma" in FLAGS: return
    L = V_L + 4 * s
    G = V_G + 4 * g
    o(f"    v_mfma_f32_16x16x32_bf16 v[{G}:{G+3}], v[{V_S}:{V_S+3}], v[{L}:{L+3}], v[{V_A}:{V_A+3}]")

def M2(s, g):
    if "nomfma" in FLAGS: return
    Ee = V_E + 2 * s
    G = V_G + 4 * g
    o(f"    v_mfma_f32_16x16x16_bf16 v[{G}:{G+3}], v[{Ee}:{Ee+1}], v[{V_WC}:{V_WC+1}], v[{G}:{G+3}]")

def Va(g):
    if "novalu" in FLAGS:
        o("    s_nop 5"); return
    G = V_G + 4 * g
    for t in range(4):
        o(f"    v_exp_f32 v{G+t}, v{G+t}")
    for t in (0, 2):
        o(f"    v_pk_add_f32 v[{G+t}:{G+t+1}], v[{G+t}:{G+t+1}], s[{S_ONE}:{S_ONE+1}]")

def Vb(s, g):
    if "novalu" in FLAGS:
        o("    s_nop 7"); return
    L = V_L + 4 * s
    G = V_G + 4 * g
    for t in range(4):
        o(f"    v_rcp_f32 v{G+t}, v{G+t}")
    for t in (0, 2):
        o(f"    v_pk_fma_f32 v[{V_NUM+t}:{V_NUM+t+1}], v[{G+t}:{G+t+1}], v[{L+t}:{L+t+1}], v[{V_NUM+t}:{V_NUM+t+1}]")
    for t in (0, 2):
        o(f"    v_pk_add_f32 v[{V_DEN+t}:{V_DEN+t+1}], v[{V_DEN+t}:{V_DEN+t+1}], v[{G+t}:{G+t+1}]")

def steps_of(sdst):
    o(f"    s_add_u32 s{sdst}, s{sdst}, 3")
    o(f"    s_lshr_b32 s{sdst}, s{sdst}, 2")
    o(f"    s_max_u32 s{sdst}, s{sdst}, 1")
    o(f"    s_cmp_gt_u32 s{sdst}, {CAP // 4}")
    o(f"    s_cselect_b32 s{sdst}, 1, s{sdst}")

def ticket():
    o(f"    v_mov_b32 v{V_T0}, {L_TICKET}")
    o(f"    v_mov_b32 v{V_T0+1}, 1")
    o("    s_mov_b64 exec, 1")
    o(f"    ds_add_rtn_u32 v{V_TK}, v{V_T0}, v{V_T0+1}")
    o("    s_mov_b64 exec, -1")

LS_ID = 0
OOL = []
def lswitch():
    global LS_ID
    LS_ID += 1
    o(f"    v_readfirstlane_b32 s71, v{V_TK}")
    o("    s_nop 3")
    o("    s_min_u32 s71, s71, 63")
    o(f"    v_readlane_b32 s{S_LREM}, v{V_CNT}, s71")
    o("    s_mov_b32 s73, 0")
    o("    s_mov_b32 s72, s71")
    o(f"    s_lshl_b64 s[72:73], s[72:73], s{S_FSH}")
    o(f"    s_or_b64 s[{S_FIFO}:{S_FIFO+1}], s[{S_FIFO}:{S_FIFO+1}], s[72:73]")
    o(f"    s_add_u32 s{S_FSH}, s{S_FSH}, 8")
    o("    s_cmp_ge_u32 s71, s51")
    o(f"    s_cbranch_scc1 K2_lend{LS_ID}")
    steps_of(S_LREM)
    o(f"    s_sub_u32 s{S_LREM}, s{S_LREM}, 1")
    o("    s_lshl_b32 s72, s71, 8")
    o(f"    v_add_u32 v{V_OADDR}, s72, v{V_OB}")
    o("    s_lshl_b32 s72, s71, 9")
    o(f"    v_add_u32 v{V_EADDR}, s72, v{V_EB}")
    o("    s_lshl_b32 s72, s71, 2")
    o(f"    v_subrev_u32 v{V_LOFFN}, s72, v{V_LOFF}")
    ticket()
    o(f"    s_branch K2_lok{LS_ID}")
    o(f"K2_lend{LS_ID}:")
    o(f"    s_mov_b32 s{S_LREM}, 0x7fffffff")
    o(f"K2_lok{LS_ID}:")

LI_ID = 0
def lissue(j):
    global LI_ID
    LI_ID += 1
    lid = LI_ID
    o("    s_waitcnt lgkmcnt(0)")
    o(f"    v_add_u32 v{V_OFFN}, v{V_OFFN}, v{V_LOFFN}")
    o("    s_mov_b64 exec, s[40:41]")
    o(f"    ds_read_b64 v[{V_E+2*j}:{V_E+2*j+1}], v{V_EADDR}")
    o("    s_mov_b64 exec, -1")
    if "noload" not in FLAGS:
        o(f"    buffer_load_dwordx4 v[{V_L+4*j}:{V_L+4*j+3}], v{V_OFFN}, s[24:27], 0 offen")
    o(f"    s_sub_u32 s{S_LREM}, s{S_LREM}, 1")
    o(f"    s_cbranch_scc1 K2_lsw{lid}")
    if "bench" in FLAGS:
        o(f"    v_add_u32 v{V_T0}, 4, v{V_OADDR}")
        o(f"    v_add_u32 v{V_T0+1}, 8, v{V_EADDR}")
    else:
        o(f"    v_add_u32 v{V_OADDR}, 4, v{V_OADDR}")
        o(f"    v_add_u32 v{V_EADDR}, 8, v{V_EADDR}")
    o(f"K2_lret{lid}:")
    o(f"    ds_read_b32 v{V_OFFN}, v{V_OADDR}")
    def ool():
        o(f"K2_lsw{lid}:")
        lswitch()
        o(f"    s_branch K2_lret{lid}")
    OOL.append(ool)

def place(e0, w, rank, t0, t1):
    o(f"    v_mul_u32_u24 v{t1}, 65, v{rank}")
    o(f"    v_and_b32 v{t1}, 0xfc, v{t1}")
    o(f"    v_lshl_add_u32 v{t1}, v{t0}, 6, v{t1}")
    o(f"    v_lshlrev_b32 v{t0}, 1, v{t1}")
    o(f"    ds_write_b32 v{t1}, v{w} offset:{L_OFFS}")
    o(f"    ds_write_b64 v{t0}, v[{e0}:{e0+1}] offset:{L_E}")

def read_an(sreg):
    o(f"    s_lshl_b32 s65, s{sreg}, 7")
    o("    s_add_u32 s65, s65, s75")
    o(f"    v_and_b32 v{V_AN}, 0xfffffff8, v{V_FOFF}")
    o(f"    v_add_u32 v{V_AN}, s65, v{V_AN}")
    o(f"    ds_read_b64 v[{V_AN}:{V_AN+1}], v{V_AN}")

def unpack_a():
    o(f"    v_lshlrev_b32 v{V_A}, 16, v{V_AN}")
    o(f"    v_and_b32 v{V_A+1}, 0xffff0000, v{V_AN}")
    o(f"    v_lshlrev_b32 v{V_A+2}, 16, v{V_AN+1}")
    o(f"    v_and_b32 v{V_A+3}, 0xffff0000, v{V_AN+1}")

NS_ID = 0
def prio():
    global NS_ID
    NS_ID += 1
    if "noprio" in FLAGS: return
    o(f"    s_cmp_lt_u32 s{S_CNODE}, 8")
    o(f"    s_cbranch_scc1 K2_pr{NS_ID}")
    o("    s_setprio 2")
    o(f"    s_cmp_lt_u32 s{S_CNODE}, 16")
    o(f"    s_cbranch_scc1 K2_pr{NS_ID}")
    o("    s_setprio 1")
    o(f"    s_cmp_lt_u32 s{S_CNODE}, 24")
    o(f"    s_cbranch_scc1 K2_pr{NS_ID}")
    o("    s_setprio 0")
    o(f"K2_pr{NS_ID}:")

def zero_acc():
    for t in range(4):
        o(f"    v_mov_b32 v{V_NUM + t}, 0")
        o(f"    v_mov_b32 v{V_DEN + t}, 0")

def cpop(endlabel):
    o(f"    s_and_b32 s{S_CNODE}, s{S_FIFO}, 0xff")
    o(f"    s_lshr_b64 s[{S_FIFO}:{S_FIFO+1}], s[{S_FIFO}:{S_FIFO+1}], 8")
    o(f"    s_sub_u32 s{S_FSH}, s{S_FSH}, 8")
    o(f"    s_cmp_ge_u32 s{S_CNODE}, s51")
    o(f"    s_cbranch_scc1 {endlabel}")
    o(f"    v_readlane_b32 s{S_CREM}, v{V_CNT}, s{S_CNODE}")
    zero_acc()
    prio()
    steps_of(S_CREM)
    o(f"    s_cselect_b32 s{S_SKIP}, 1, 0")

def peek_an():
    o(f"    s_and_b32 s71, s{S_FIFO}, 0xff")
    o("    s_min_u32 s71, s71, 32")
    read_an(71)

def finalize():
    T = V_T0
    o(f"    s_lshl_b32 s65, s{S_CNODE}, 7")
    o("    s_add_u32 s65, s65, s77")
    o(f"    s_mul_i32 s62, s{S_CNODE}, {XSTR}")
    o(f"    s_add_u32 s62, s62, {L_X}")
    o(f"    ds_write_b128 v{V_SCRW}, v[{V_NUM}:{V_NUM+3}]")
    o(f"    ds_read2st64_b32 v[{V_NUM}:{V_NUM+1}], v{V_SCRR} offset0:0 offset1:1")
    o(f"    ds_read2st64_b32 v[{V_NUM+2}:{V_NUM+3}], v{V_SCRR} offset0:2 offset1:3")
    o(f"    ds_write_b128 v{V_SCRW}, v[{V_DEN}:{V_DEN+3}]")
    o(f"    ds_read2st64_b32 v[{V_DEN}:{V_DEN+1}], v{V_SCRR} offset0:0 offset1:1")
    o(f"    ds_read2st64_b32 v[{V_DEN+2}:{V_DEN+3}], v{V_SCRR} offset0:2 offset1:3")
    o(f"    v_add_u32 v{T}, s65, v{V_FOFF}")
    o(f"    v_add_u32 v{T+2}, s62, v{V_FOFF}")
    o(f"    v_mov_b32 v{T+1}, 0")
    o(f"    v_mov_b32 v{T+3}, 0")
    o(f"    ds_read_u16_d16_hi v{T+1}, v{T}")
    o(f"    ds_read_u16_d16_hi v{T+3}, v{T+2}")
    o("    s_waitcnt lgkmcnt(0)")
    Nn, Dd = V_NUM, V_DEN
    o(f"    v_pk_add_f32 v[{Nn}:{Nn+1}], v[{Nn}:{Nn+1}], v[{Nn+2}:{Nn+3}]")
    o(f"    v_pk_add_f32 v[{Dd}:{Dd+1}], v[{Dd}:{Dd+1}], v[{Dd+2}:{Dd+3}]")
    o(f"    v_add_f32 v{Nn}, v{Nn}, v{Nn+1}")
    o(f"    v_add_f32 v{Dd}, v{Dd}, v{Dd+1}")
    o(f"    v_add_f32 v{Dd}, s66, v{Dd}")
    o(f"    v_rcp_f32 v{Dd}, v{Dd}")
    o("    s_nop 0")
    o(f"    v_fma_f32 v{Nn}, v{Nn}, v{Dd}, v{T+1}")
    o(f"    v_max_f32 v{Nn}, 0, v{Nn}")
    o(f"    v_add_f32 v{Nn}, v{Nn}, v{T+3}")
    o(f"    v_cvt_pk_bf16_f32 v{Nn}, v{Nn}, v{Nn}")
    o(f"    ds_write_b16 v{T}, v{Nn}")

def process_simple(tag, sn):
    o(f"    s_lshl_b32 s72, s{S_CNODE}, 8")
    o(f"    v_add_u32 v{V_OADDR}, s72, v{V_OB}")
    o(f"    s_lshl_b32 s72, s{S_CNODE}, 9")
    o(f"    v_add_u32 v{V_EADDR}, s72, v{V_EB}")
    o(f"    s_lshl_b32 s72, s{S_CNODE}, 2")
    o(f"    v_subrev_u32 v{V_LOFFN}, s72, v{V_LOFF}")
    o(f"K2_loop{tag}:")
    o(f"    ds_read_b128 v[{V_OFF4}:{V_OFF4+3}], v{V_OADDR}")
    o("    s_mov_b64 exec, s[40:41]")
    for s in range(4):
        o(f"    ds_read_b64 v[{V_E+2*s}:{V_E+2*s+1}], v{V_EADDR} offset:{8*s}")
    o("    s_mov_b64 exec, -1")
    o("    s_waitcnt lgkmcnt(4)")
    for s in range(4):
        o(f"    v_add_u32 v{V_OFF4+s}, v{V_OFF4+s}, v{V_LOFFN}")
    for s in range(4):
        o(f"    buffer_load_dwordx4 v[{V_L+4*s}:{V_L+4*s+3}], v{V_OFF4+s}, s[24:27], 0 offen")
    o(f"    v_add_u32 v{V_OADDR}, 16, v{V_OADDR}")
    o(f"    v_add_u32 v{V_EADDR}, 32, v{V_EADDR}")
    o("    s_waitcnt vmcnt(0) lgkmcnt(0)")
    for s in range(4):
        M1(s, 0)
        o("    s_nop 5")
        M2(s, 0)
        o("    s_nop 7")
        Va(0)
        Vb(s, 0)
        o(f"    s_sub_u32 s{sn}, s{sn}, 1")
        o(f"    s_cmp_eq_u32 s{sn}, 0")
        o(f"    s_cbranch_scc1 K2_pdone{tag}")
    o(f"    s_branch K2_loop{tag}")
    o(f"K2_pdone{tag}:")

TL = "tl" in FLAGS
def stamp(i):
    if not TL: return
    o("    s_waitcnt lgkmcnt(0)")
    o(f"    s_memrealtime s[{82+2*i}:{83+2*i}]")
    o("    s_waitcnt lgkmcnt(0)")
def stamp_flush():
    if not TL: return
    o("    s_waitcnt vmcnt(0) lgkmcnt(0)")
    o("    s_memrealtime s[94:95]")
    o("    s_memtime s[96:97]")
    o("    s_waitcnt lgkmcnt(0)")
    srd(20, 10, 11, 0x100000, 0x4000000)
    o("    s_lshl_b32 s98, s2, 3")
    o("    s_add_u32 s98, s98, s48")
    o("    s_lshl_b32 s98, s98, 6")
    for i in range(8):
        o(f"    v_mov_b32 v{i}, s{80+2*i}")
    o("    v_mov_b32 v8, s96")
    o("    s_getreg_b32 s99, hwreg(HW_REG_HW_ID)")
    o("    s_getreg_b32 s100, hwreg(HW_REG_XCC_ID)")
    o("    v_mov_b32 v9, s99")
    o("    v_mov_b32 v10, s100")
    o("    v_mov_b32 v11, 0")
    o("    v_mov_b32 v12, 0")
    o("    s_mov_b64 exec, 1")
    o("    buffer_store_dwordx4 v[0:3], v12, s[20:23], s98 offen")
    o("    buffer_store_dwordx4 v[4:7], v12, s[20:23], s98 offen offset:16")
    o("    buffer_store_dwordx4 v[8:11], v12, s[20:23], s98 offen offset:32")
    o("    s_mov_b64 exec, -1")

def lds_fill(base, nbytes, vdata):
    full = nbytes // 8192
    for k in range(full):
        o(f"    ds_write_b128 v10, v[{vdata}:{vdata+3}] offset:{base + 8192 * k}")
    rem = nbytes - full * 8192
    if rem:
        o(f"    v_cmp_gt_u32 vcc, {rem // 16}, v0")
        o("    s_and_saveexec_b64 s[44:45], vcc")
        o(f"    ds_write_b128 v10, v[{vdata}:{vdata+3}] offset:{base + 8192 * full}")
        o("    s_mov_b64 exec, s[44:45]")

def k2_full():
    o(".globl gk2_kernel")
    o(".p2align 8")
    o(".type gk2_kernel,@function")
    o("gk2_kernel:")
    if "k2empty" in FLAGS:
        o("    s_endpgm")
    o(f"    s_cmp_ge_u32 s2, {2 * NB}")
    o("    s_cbranch_scc1 K2_done0")
    if TL:
        o("    s_memtime s[80:81]")
        stamp(0)
    if "noprio" not in FLAGS:
        o("    s_setprio 3")
    o("    s_load_dwordx2 s[4:5], s[0:1], 0")
    o("    s_load_dwordx2 s[6:7], s[0:1], 48")
    o("    s_load_dwordx2 s[8:9], s[0:1], 72")
    o("    s_load_dwordx2 s[10:11], s[0:1], 88")
    o("    s_and_b32 s46, s2, 1")
    o("    s_lshr_b32 s47, s2, 1")
    o("    v_and_b32 v1, 63, v0")
    o("    v_lshrrev_b32 v2, 6, v0")
    o("    v_and_b32 v3, 15, v0")
    o("    v_bfe_u32 v4, v0, 4, 2")
    o("    v_readfirstlane_b32 s48, v2")
    o("    v_lshrrev_b32 v6, 2, v0")
    o("    v_lshlrev_b32 v7, 2, v6")
    o("    v_lshlrev_b32 v10, 4, v0")
    o("    s_lshl_b32 s49, s47, 9")
    o(f"    s_mul_i32 s50, s47, {NPB}")
    o("    v_cmp_gt_u32 s[44:45], 16, v0")
    o("    s_lshl_b32 s59, s50, 8")
    o("    s_add_u32 s60, s59, 8192")
    o("    s_waitcnt lgkmcnt(0)")
    srd(12, 10, 11, NB * W * 4, OFF_T)
    o("    buffer_load_dword v5, v7, s[12:15], s49 offen")
    srd(36, 4, 5, N * 256)
    o("    buffer_load_dwordx4 v[32:35], v10, s[36:39], s59 offen")
    o("    s_mov_b64 exec, s[44:45]")
    o("    buffer_load_dwordx4 v[36:39], v10, s[36:39], s60 offen")
    o("    s_mov_b64 exec, -1")
    srd(28, 10, 11, 65536, OFF_FR)
    o("    s_and_b32 s56, s48, 1")
    o("    s_lshr_b32 s57, s48, 1")
    o("    s_lshl_b32 s58, s56, 1")
    o("    s_add_u32 s58, s58, s46")
    o("    s_lshl_b32 s58, s58, 2")
    o("    s_add_u32 s58, s58, s57")
    o("    s_lshl_b32 s58, s58, 12")
    o("    v_lshlrev_b32 v8, 4, v1")
    FR = 16
    for s in range(4):
        o(f"    buffer_load_dwordx4 v[{FR + 4 * s}:{FR + 4 * s + 3}], v8, s[28:31], s58 offen offset:{1024 * s}")
    srd(20, 6, 7, 1024)
    o("    s_lshl_b32 s62, s46, 7")
    o("    v_lshlrev_b32 v9, 3, v3")
    o("    v_lshl_add_u32 v9, v4, 1, v9")
    o("    v_add_u32 v9, s62, v9")
    WCR = 64
    for k in range(4):
        o(f"    buffer_load_ushort v{WCR + k}, v9, s[20:23], 0 offen offset:{256 * k}")
    for r in range(12, 16):
        o(f"    v_mov_b32 v{r}, 0")
    for r in range(68, 72):
        o(f"    v_mov_b32 v{r}, {hex(DUMMY_OFF)}")
    lds_fill(0, 512, 12)
    lds_fill(L_E, NPB * CAP * 8, 12)
    lds_fill(L_OFFS, NPB * CAP * 4, 68)
    srd(16, 10, 11, E * 12, OFF_REC)
    srd(24, 10, 11, (DUMMY_ROW + 2) * 512, OFF_BH)
    srd(52, 8, 9, N * 256)
    o("    s_mov_b32 s40, 0x22221111")
    o("    s_mov_b32 s41, 0x88884444")
    o(f"    s_movk_i32 s42, {CAP}")
    o(f"    s_mov_b32 s43, {hex(NLOG2E)}")
    o("    s_cmp_eq_u32 s56, 0")
    o("    s_cselect_b32 s62, s43, 1.0")
    o(f"    s_mov_b32 s63, {L_U}")
    o(f"    s_cselect_b32 s63, {L_A}, s63")
    o("    s_lshl_b32 s64, s57, 1")
    o("    s_add_u32 s63, s63, s64")
    o("    s_waitcnt vmcnt(10)")
    stamp(1)
    o("    v_lshrrev_b32 v11, 16, v5")
    o("    v_and_b32 v5, 0xffff, v5")
    o("    v_and_b32 v2, 3, v0")
    o(f"    v_mul_u32_u24 v7, {CH}, v6")
    o("    v_add3_u32 v7, v7, v11, v2")
    o("    v_mul_u32_u24 v7, 12, v7")
    RB = [48, 52, 56, 60]
    for i in range(4):
        o(f"    v_add_u32 v11, {4 * i}, v2")
        o(f"    v_cmp_gt_u32 s[{68 + 2 * i}:{69 + 2 * i}], v5, v11")
    for i in range(4):
        o(f"    s_mov_b64 exec, s[{68 + 2 * i}:{69 + 2 * i}]")
        o(f"    buffer_load_dwordx3 v[{RB[i]}:{RB[i] + 2}], v7, s[16:19], 0 offen offset:{48 * i}")
    o("    s_mov_b64 exec, -1")
    NPF = 0
    if "pf" in FLAGS:
        o("    s_lshr_b32 s61, s2, 3")
        o(f"    s_mul_i32 s61, s61, {132 * 512}")
        o("    s_lshl_b32 s65, s46, 8")
        o("    s_add_u32 s61, s61, s65")
        o("    v_lshlrev_b32 v11, 9, v6")
        o("    v_lshl_add_u32 v11, v2, 6, v11")
        o("    buffer_load_dword v70, v11, s[24:27], s61 offen")
        o("    s_add_u32 s61, s61, 0x10000")
        o("    v_cmp_gt_u32 s[44:45], 16, v0")
        o("    s_nop 3")
        o("    s_mov_b64 exec, s[44:45]")
        o("    buffer_load_dword v71, v11, s[24:27], s61 offen")
        o("    s_mov_b64 exec, -1")
        NPF = 2
    o("    v_and_b32 v11, 0x1f0, v0")
    o("    v_add_u32 v11, v11, v10")
    o("    v_cmp_gt_u32 s[44:45], 16, v0")
    o("    v_lshlrev_b32 v8, 9, v4")
    o("    v_lshl_add_u32 v8, v3, 3, v8")
    o("    v_add_u32 v8, s63, v8")
    o(f"    v_mul_u32_u24 v9, {XSTR}, v3")
    o("    v_lshl_add_u32 v9, v4, 4, v9")
    o(f"    s_waitcnt vmcnt({12 + NPF})")
    o(f"    ds_write_b128 v11, v[32:35] offset:{L_X}")
    o("    s_mov_b64 exec, s[44:45]")
    o(f"    ds_write_b128 v10, v[36:39] offset:{L_X + 32 * XSTR}")
    o("    s_mov_b64 exec, -1")
    o(f"    s_waitcnt vmcnt({4 + NPF})")
    for k in range(4):
        o(f"    v_lshlrev_b32 v{WCR + k}, 16, v{WCR + k}")
        o(f"    v_mul_f32 v{WCR + k}, s43, v{WCR + k}")
    o(f"    v_cvt_pk_bf16_f32 v68, v{WCR}, v{WCR + 1}")
    o(f"    v_cvt_pk_bf16_f32 v69, v{WCR + 2}, v{WCR + 3}")
    o("    v_mov_b32 v64, 1")
    o("    s_waitcnt lgkmcnt(0)")
    o("    s_barrier")
    stamp(2)
    XA = 32
    D = 12
    def xreads(tl):
        for s in range(4):
            o(f"    ds_read_b128 v[{XA + 4 * s}:{XA + 4 * s + 3}], v9 offset:{L_X + 64 * s + 16 * XSTR * tl}")
    def tile(tl):
        for s in range(4):
            c = "0" if s == 0 else f"v[{D}:{D + 3}]"
            o(f"    v_mfma_f32_16x16x32_bf16 v[{D}:{D + 3}], v[{XA + 4 * s}:{XA + 4 * s + 3}], v[{FR + 4 * s}:{FR + 4 * s + 3}], {c}")
        if tl < 2:
            xreads(tl + 1)
            o("    s_nop 3")
        else:
            o("    s_nop 7")
        nj = 4 if tl < 2 else 1
        for j in range(nj):
            o(f"    v_mul_f32 v{D + j}, s62, v{D + j}")
        for j in range(nj):
            o(f"    v_cvt_pk_bf16_f32 v{D + j}, v{D + j}, v{D + j}")
        if tl == 2:
            o("    s_mov_b64 exec, 0xffff")
        for j in range(nj):
            o(f"    ds_write_b16 v8, v{D + j} offset:{2048 * tl + 128 * j}")
        if tl == 2:
            o("    s_mov_b64 exec, -1")
    NR = [65, 66, 67, 70]
    xreads(0)
    for i in range(4):
        o(f"    s_waitcnt vmcnt({3 - i + NPF})")
        o(f"    s_mov_b64 exec, s[{68 + 2 * i}:{69 + 2 * i}]")
        o(f"    v_and_b32 v{NR[i]}, 0xfc, v{RB[i] + 2}")
        o(f"    ds_add_rtn_u32 v{RB[i] + 3}, v{NR[i]}, v64 offset:{L_CNT}")
    o("    s_mov_b64 exec, -1")
    o("    s_waitcnt lgkmcnt(4)")
    tile(0)
    o("    s_waitcnt lgkmcnt(8)")
    for i in range(4):
        o(f"    s_mov_b64 exec, s[{68 + 2 * i}:{69 + 2 * i}]")
        o(f"    v_cmp_gt_u32 vcc, s42, v{RB[i] + 3}")
        o("    s_and_b64 exec, exec, vcc")
        place(RB[i], RB[i] + 2, RB[i] + 3, NR[i], 10)
    o("    s_mov_b64 exec, -1")
    o("    s_waitcnt lgkmcnt(12)")
    tile(1)
    o("    s_waitcnt lgkmcnt(4)")
    tile(2)
    stamp(3)
    o("    v_add_u32 v11, 16, v2")
    o("    v_add_u32 v7, 192, v7")
    o("K2_rem:")
    o("    v_cmp_gt_u32 vcc, v5, v11")
    o("    s_and_b64 exec, exec, vcc")
    o("    s_cbranch_execz K2_rem_end")
    o("    buffer_load_dwordx3 v[48:50], v7, s[16:19], 0 offen")
    o("    s_waitcnt vmcnt(0)")
    o("    v_and_b32 v10, 0xfc, v50")
    o(f"    ds_add_rtn_u32 v51, v10, v64 offset:{L_CNT}")
    o("    s_waitcnt lgkmcnt(0)")
    o("    s_mov_b64 s[44:45], exec")
    o("    v_cmp_gt_u32 vcc, s42, v51")
    o("    s_and_b64 exec, exec, vcc")
    place(48, 50, 51, 10, 12)
    o("    s_mov_b64 exec, s[44:45]")
    o("    v_add_u32 v11, 4, v11")
    o("    v_add_u32 v7, 48, v7")
    o("    s_branch K2_rem")
    o("K2_rem_end:")
    o("    s_mov_b64 exec, -1")
    for k in range(2):
        o(f"    v_mov_b32 v{V_WC + k}, v{68 + k}")
    o("    s_lshl_b32 s62, s46, 7")
    o(f"    v_lshlrev_b32 v{V_FOFF}, 3, v3")
    o(f"    v_lshl_add_u32 v{V_FOFF}, v4, 1, v{V_FOFF}")
    o(f"    v_add_u32 v{V_FOFF}, s62, v{V_FOFF}")
    o(f"    s_sub_u32 s75, {L_A}, s62")
    o(f"    s_sub_u32 s77, {L_U}, s62")
    o("    s_lshl_b32 s62, s46, 8")
    o(f"    v_lshlrev_b32 v{V_LOFF}, 4, v3")
    o(f"    v_add_u32 v{V_LOFF}, s62, v{V_LOFF}")
    o(f"    v_lshlrev_b32 v{V_OB}, 6, v4")
    o(f"    v_add_u32 v{V_OB}, {L_OFFS}, v{V_OB}")
    o("    v_lshrrev_b32 v17, 2, v3")
    o(f"    v_lshlrev_b32 v{V_EB}, 7, v17")
    o(f"    v_add_u32 v{V_EB}, {L_E}, v{V_EB}")
    o("    s_lshl_b32 s62, s48, 10")
    o(f"    s_add_u32 s62, s62, {L_SCR}")
    o(f"    v_lshlrev_b32 v{V_SCRW}, 4, v1")
    o(f"    v_add_u32 v{V_SCRW}, s62, v{V_SCRW}")
    o(f"    v_lshlrev_b32 v{V_SCRR}, 4, v3")
    o(f"    v_lshl_add_u32 v{V_SCRR}, v4, 2, v{V_SCRR}")
    o(f"    v_add_u32 v{V_SCRR}, s62, v{V_SCRR}")
    o("    v_and_b32 v18, 3, v3")
    o("    v_mov_b32 v19, 0x3f80")
    o("    v_cmp_eq_u32 s[44:45], v4, v17")
    for t in range(4):
        o(f"    v_cmp_eq_u32 vcc, {t}, v18")
        o("    s_and_b64 s[62:63], s[44:45], vcc")
        o("    s_nop 0")
        o(f"    v_cndmask_b32 v{V_S + t}, 0, v19, s[62:63]")
    o("    v_lshlrev_b32 v8, 2, v1")
    o(f"    s_sub_u32 s51, {N}, s50")
    o(f"    s_min_u32 s51, s51, {NPB}")
    o("    s_mov_b32 s66, 0x358637bd")
    o(f"    s_mov_b32 s{S_ONE}, 1.0")
    o(f"    s_mov_b32 s{S_ONE+1}, 1.0")
    o(f"    s_mov_b64 s[{S_FIFO}:{S_FIFO+1}], 0")
    o(f"    s_mov_b32 s{S_FSH}, 0")
    o(f"    v_mov_b32 v{V_OADDR}, v{V_OB}")
    o(f"    v_mov_b32 v{V_EADDR}, v{V_EB}")
    o(f"    v_mov_b32 v{V_LOFFN}, v{V_LOFF}")
    o("    s_waitcnt lgkmcnt(0)")
    o("    s_barrier")
    stamp(4)
    o(f"    ds_read_b32 v{V_CNT}, v8 offset:{L_CNT}")
    ticket()
    for r in range(8):
        o(f"    v_mov_b32 v{V_E + r}, 0")
    o("    s_waitcnt lgkmcnt(0)")
    if "k2pro" in FLAGS:
        o("    s_branch K2_done")
    lswitch()
    o(f"    ds_read_b32 v{V_OFFN}, v{V_OADDR}")
    peek_an()
    for j in range(R):
        lissue(j)
    cpop("K2_slowscan")
    unpack_a()
    if "bench" in FLAGS:
        o(f"    s_movk_i32 s{S_CREM}, 2000")
        o(f"    s_mov_b32 s{S_LREM}, 0x7fffffff")
        o(f"    s_mov_b64 s[{S_FIFO}:{S_FIFO+1}], 63")
        o(f"    s_mov_b32 s{S_FSH}, 8")
    o(f"    s_waitcnt vmcnt({R - 1})")
    M1(0, 0)
    o("    s_nop 5")
    M2(0, 0)
    o("    s_nop 3")
    o(f"    s_sub_u32 s{S_CREM}, s{S_CREM}, 2")
    o("    s_cbranch_scc0 K2_step0")
    peek_an()
    o("    s_waitcnt lgkmcnt(0)")
    unpack_a()
    o("    s_nop 0")
    for j in range(R):
        jn = (j + 1) % R
        g, gn = j & 1, (j + 1) & 1
        o(f"K2_step{j}:")
        o(f"    s_waitcnt vmcnt({R - 2})")
        M1(jn, gn)
        Va(g)
        M2(jn, gn)
        Vb(j, g)
        lissue(j)
        o(f"    s_sub_u32 s{S_CREM}, s{S_CREM}, 1")
        o(f"    s_cmp_lt_i32 s{S_CREM}, 0")
        o(f"    s_cbranch_scc1 K2_rare{j}")
        if jn == 0:
            o("    s_branch K2_step0")
        def ool(j=j, jn=jn):
            o(f"K2_rare{j}:")
            o(f"    s_cmp_eq_i32 s{S_CREM}, -1")
            o(f"    s_cbranch_scc1 K2_pk{j}")
            o(f"    s_cmp_lg_u32 s{S_SKIP}, 0")
            o(f"    s_cbranch_scc1 K2_nf{j}")
            finalize()
            o(f"K2_nf{j}:")
            cpop("K2_slowscan")
            o(f"    s_sub_u32 s{S_CREM}, s{S_CREM}, 2")
            o(f"    s_cbranch_scc0 K2_step{jn}")
            o(f"K2_pk{j}:")
            peek_an()
            o("    s_waitcnt lgkmcnt(0)")
            unpack_a()
            o(f"    s_branch K2_step{jn}")
        OOL.append(ool)
    i = 0
    while i < len(OOL):
        OOL[i]()
        i += 1
    o("K2_slowscan:")
    o("    s_waitcnt vmcnt(0) lgkmcnt(0)")
    o(f"    v_cmp_lt_u32 vcc, s42, v{V_CNT}")
    o("    s_cmp_eq_u64 vcc, 0")
    o("    s_cbranch_scc1 K2_done")
    o("    s_mov_b64 s[78:79], vcc")
    o("K2_snode:")
    o("    s_cmp_eq_u64 s[78:79], 0")
    o("    s_cbranch_scc1 K2_done")
    o(f"    s_ff1_i32_b64 s{S_CNODE}, s[78:79]")
    o(f"    s_bitset0_b64 s[78:79], s{S_CNODE}")
    o(f"    s_and_b32 s65, s{S_CNODE}, 7")
    o("    s_cmp_lg_u32 s65, s48")
    o("    s_cbranch_scc1 K2_snode")
    read_an(S_CNODE)
    o("    s_waitcnt lgkmcnt(0)")
    unpack_a()
    zero_acc()
    o(f"    s_lshl_b32 s61, s{S_CNODE}, 2")
    o("    s_mov_b32 s68, 0")
    o("K2_sseg:")
    o(f"    s_cmp_ge_u32 s68, {W}")
    o("    s_cbranch_scc1 K2_sfin")
    o("    s_lshl_b32 s69, s68, 2")
    o("    s_add_u32 s69, s69, s49")
    o("    s_buffer_load_dword s70, s[12:15], s69")
    o("    s_waitcnt lgkmcnt(0)")
    o("    s_lshr_b32 s71, s70, 16")
    o("    s_and_b32 s70, s70, 0xffff")
    o(f"    s_mul_i32 s72, s68, {CH}")
    o("    s_add_u32 s71, s71, s72")
    o("    s_add_u32 s68, s68, 1")
    o("    s_mov_b32 s73, 0")
    o("K2_sgrp:")
    o("    s_cmp_ge_u32 s73, s70")
    o("    s_cbranch_scc1 K2_sseg")
    G = V_G
    o(f"    v_mbcnt_lo_u32_b32 v{G}, -1, 0")
    o(f"    v_mbcnt_hi_u32_b32 v{G}, -1, v{G}")
    o(f"    v_add_u32 v{G+1}, s73, v{G}")
    o("    s_add_u32 s74, s71, s73")
    o(f"    v_add_u32 v{G+2}, s74, v{G}")
    o(f"    v_mul_u32_u24 v{G+2}, 12, v{G+2}")
    o(f"    v_cmp_gt_u32 vcc, s70, v{G+1}")
    o("    s_add_u32 s73, s73, 64")
    o(f"    v_mov_b32 v{V_L+2}, 0x1fc")
    o("    s_mov_b64 exec, vcc")
    o(f"    buffer_load_dwordx3 v[{V_L}:{V_L+2}], v{G+2}, s[16:19], 0 offen")
    o("    s_mov_b64 exec, -1")
    o(f"    s_lshl_b32 s65, s{S_CNODE}, 8")
    o(f"    v_lshlrev_b32 v{G+1}, 2, v{G}")
    o(f"    v_add_u32 v{G+1}, s65, v{G+1}")
    o(f"    v_lshlrev_b32 v{G+2}, 1, v{G+1}")
    o(f"    v_mov_b32 v{G+3}, {hex(DUMMY_OFF)}")
    o(f"    v_mov_b32 v{G+4}, 0")
    o(f"    v_mov_b32 v{G+5}, 0")
    o(f"    ds_write_b32 v{G+1}, v{G+3} offset:{L_OFFS}")
    o(f"    ds_write_b64 v{G+2}, v[{G+4}:{G+5}] offset:{L_E}")
    o("    s_waitcnt vmcnt(0)")
    o(f"    v_and_b32 v{G+1}, 0x1fc, v{V_L+2}")
    o(f"    v_cmp_eq_u32 vcc, s61, v{G+1}")
    o("    s_bcnt1_i32_b64 s64, vcc")
    o("    s_cmp_eq_u32 s64, 0")
    o("    s_cbranch_scc1 K2_sgrp")
    o(f"    v_mbcnt_lo_u32_b32 v{V_L+3}, vcc_lo, 0")
    o(f"    v_mbcnt_hi_u32_b32 v{V_L+3}, vcc_hi, v{V_L+3}")
    o("    s_mov_b64 exec, vcc")
    place(V_L, V_L + 2, V_L + 3, G + 1, G + 2)
    o("    s_mov_b64 exec, -1")
    o("    s_add_u32 s64, s64, 3")
    o("    s_lshr_b32 s64, s64, 2")
    o("    s_waitcnt lgkmcnt(0)")
    process_simple("s", 64)
    o("    s_branch K2_sgrp")
    o("K2_sfin:")
    finalize()
    o("    s_branch K2_snode")
    o("K2_done:")
    o("    s_waitcnt lgkmcnt(0)")
    o("    s_barrier")
    o("    v_mbcnt_lo_u32_b32 v0, -1, 0")
    o("    v_mbcnt_hi_u32_b32 v0, -1, v0")
    o("    s_lshl_b32 s62, s48, 6")
    o("    v_add_u32 v0, s62, v0")
    o("    s_lshl_b32 s62, s51, 3")
    o("    v_cmp_gt_u32 vcc, s62, v0")
    o("    s_and_b64 exec, exec, vcc")
    o("    s_cbranch_execz K2_done1")
    o("    v_lshlrev_b32 v1, 4, v0")
    o(f"    ds_read_b128 v[4:7], v1 offset:{L_U}")
    o("    v_lshrrev_b32 v2, 3, v0")
    o("    v_and_b32 v3, 7, v0")
    o("    v_lshlrev_b32 v2, 8, v2")
    o("    v_lshl_add_u32 v2, v3, 4, v2")
    o("    s_lshl_b32 s62, s50, 8")
    o("    s_lshl_b32 s63, s46, 7")
    o("    s_add_u32 s62, s62, s63")
    o("    s_waitcnt lgkmcnt(0)")
    o("    buffer_store_dwordx4 v[4:7], v2, s[52:55], s62 offen")
    o("K2_done1:")
    o("    s_mov_b64 exec, -1")
    stamp_flush()
    o("K2_done0:")
    o("    s_endpgm")

def desc(name, vgpr, sgpr):
    o(f".amdhsa_kernel {name}")
    o(f"  .amdhsa_next_free_vgpr {vgpr}")
    o(f"  .amdhsa_next_free_sgpr {sgpr}")
    o(f"  .amdhsa_accum_offset {(vgpr + 3) // 4 * 4}")
    o("  .amdhsa_group_segment_fixed_size 0")
    o("  .amdhsa_kernarg_size 96")
    o("  .amdhsa_user_sgpr_count 2")
    o("  .amdhsa_user_sgpr_kernarg_segment_ptr 1")
    o("  .amdhsa_system_sgpr_workgroup_id_x 1")
    o(".end_amdhsa_kernel")

hdr()
k1()
k2_full()
o('.section .rodata,"a"')
o(".p2align 6")
desc("gk1_kernel", 256 if TL1 else 240, 102)
o(".p2align 6")
desc("gk2_kernel", K2_VGPR, 102 if TL else 80)
path = sys.argv[1] if len(sys.argv) > 1 else f"cdna_kernels/{NAME}.s"
open(path, "w").write("\n".join(out) + "\n")
print("wrote", path, "lines", len(out), "K2 LDS", K2_LDS)
```

```python
import sys, os
FLAGS = os.environ.get("GF", "").split(",") + ["tfirst", "k1b", "xmap"]

NAME = "gather_scatter__edge_featured_mpnn_gatedgcn__graph"
N = 12500
E = 400000
W = 128
CH = 3125
NPB = 33
NB = 379
CAP = 64
TPW = 2
NTILES = 782
NGW = (NTILES + 8 * TPW - 1) // (8 * TPW)
K1_GRID = W + 2 + 2 * NGW if "xmap" not in FLAGS else W + 16 * ((NGW + 1 + 7) // 8)
DUMMY_ROW = 12512
DUMMY_OFF = (DUMMY_ROW + 1) * 512
OFF_BH = 0
OFF_FR = 0x700000
OFF_T = 0x800000
OFF_REC = 0x900000
CHS = 37504
K1_LDS = 42240
L_R = 4096
SC = " sc1" if "sc" in FLAGS else ""
NLOG2E = 0xBFB8AA3B

out = []
def o(s=""):
    out.append(s)

L_CNT = 0
L_TICKET = 256
L_OFFS = 512
L_E = L_OFFS + NPB * CAP * 4
L_SCR = L_E + NPB * CAP * 8
L_A = L_SCR + 8 * 1024
L_U = L_A + NPB * 128
XSTR = 272
L_X = L_U + NPB * 128
L_WC = L_X + NPB * XSTR
K2_LDS = L_WC + 512
assert L_E % 16 == 0 and L_SCR % 16 == 0

def hdr():
    o("; Kernarg layout for this problem (96 bytes, ptrs only, base s[0:1]):")
    o(f"; @launch kernel=gk1_kernel grid=({K1_GRID},1,1) block=(512,1,1) lds={K1_LDS}")
    o(f"; @launch kernel=gk2_kernel grid=({2 * NB},1,1) block=(512,1,1) lds={K2_LDS}")
    o('.amdgcn_target "amdgcn-amd-amdhsa--gfx950"')
    o(".text")

def srd(d, lo, hi, nbytes, add=0):
    if add:
        o(f"    s_add_u32 s{d}, s{lo}, {hex(add)}")
        o(f"    s_addc_u32 s{d+1}, s{hi}, 0")
    else:
        o(f"    s_mov_b32 s{d}, s{lo}")
        o(f"    s_mov_b32 s{d+1}, s{hi}")
    o(f"    s_mov_b32 s{d+2}, {hex(nbytes)}")
    o(f"    s_mov_b32 s{d+3}, 0x00020000")

TL1 = "tl1" in FLAGS
def st1(i):
    if not TL1: return
    o("    s_waitcnt lgkmcnt(0)")
    o(f"    s_memrealtime s[{80+2*i}:{81+2*i}]")
    o("    s_waitcnt lgkmcnt(0)")
def st1_flush():
    if not TL1: return
    o("    s_mov_b64 exec, -1")
    o("    s_waitcnt vmcnt(0) lgkmcnt(0)")
    o("    s_memrealtime s[100:101]")
    o("    s_waitcnt lgkmcnt(0)")
    srd(96, 26, 27, 0x100000, 0x4100000)
    for i in range(5):
        o(f"    v_mov_b32 v{240+i}, s{80+2*i}")
    o("    v_mov_b32 v245, s100")
    o("    v_mov_b32 v246, 0")
    o("    v_mov_b32 v247, 0")
    o("    v_lshrrev_b32 v248, 6, v0")
    o("    v_lshlrev_b32 v248, 6, v248")
    o("    s_mov_b64 exec, 1")
    o("    buffer_store_dwordx4 v[240:243], v248, s[96:99], s95 offen")
    o("    buffer_store_dwordx4 v[244:247], v248, s[96:99], s95 offen offset:16")
    o("    s_mov_b64 exec, -1")

def k1():
    o(".globl gk1_kernel")
    o(".p2align 8")
    o(".type gk1_kernel,@function")
    o("gk1_kernel:")
    o(f"    s_cmp_ge_u32 s2, {K1_GRID}")
    o("    s_cbranch_scc1 K1_done0")
    st1(0)
    o("    s_lshl_b32 s95, s2, 9")
    o("    s_load_dwordx16 s[4:19], s[0:1], 0")
    o("    s_load_dwordx8 s[20:27], s[0:1], 64")
    o(f"    s_cmp_ge_u32 s2, {W}")
    o("    s_cbranch_scc1 K1_gemm" if "nogemm" not in FLAGS else "    s_cbranch_scc1 K1_done")
    if "nopart" in FLAGS:
        o("    s_branch K1_done")
    NI = 7
    o("    v_lshlrev_b32 v1, 3, v0")
    o("    v_lshlrev_b32 v2, 2, v0")
    o("    v_mov_b32 v4, 0")
    o("    ds_write_b32 v2, v4")
    o(f"    s_mul_i32 s3, s2, {CH * 4}")
    o("    s_lshl_b32 s28, s3, 1")
    o("    s_waitcnt lgkmcnt(0)")
    o("    s_add_u32 s32, s10, s3")
    o("    s_addc_u32 s33, s11, 0")
    o(f"    s_mov_b32 s34, {CH * 4}")
    o("    s_mov_b32 s35, 0x00020000")
    o("    s_add_u32 s36, s8, s3")
    o("    s_addc_u32 s37, s9, 0")
    o(f"    s_mov_b32 s38, {CH * 4}")
    o("    s_mov_b32 s39, 0x00020000")
    o("    s_add_u32 s40, s6, s28")
    o("    s_addc_u32 s41, s7, 0")
    o(f"    s_mov_b32 s42, {CH * 8}")
    o("    s_mov_b32 s43, 0x00020000")
    o(f"    s_mul_i32 s29, s2, {CHS}")
    o(f"    s_add_u32 s29, s29, {hex(OFF_REC)}")
    o("    s_add_u32 s44, s26, s29")
    o("    s_addc_u32 s45, s27, 0")
    o(f"    s_mov_b32 s46, {CHS}")
    o("    s_mov_b32 s47, 0x00020000")
    srd(48, 26, 27, NB * W * 4, OFF_T)
    R = lambda i: 16 + 4 * i
    for i in range(NI):
        o(f"    s_movk_i32 s{56 + i}, {i * 2048}")
    for i in range(NI):
        o(f"    s_movk_i32 s{72 + i}, {i * 4096}")
    for i in range(NI):
        o(f"    buffer_load_dword v{80 + i}, v2, s[32:35], s{56 + i} offen")
    if "k1b" in FLAGS:
        o("    s_barrier")
    for i in range(NI):
        o(f"    buffer_load_dword v{96 + i}, v2, s[36:39], s{56 + i} offen")
    for i in range(NI):
        o(f"    buffer_load_dwordx2 v[{R(i)}:{R(i) + 1}], v1, s[40:43], s{72 + i} offen")
    o("    v_mov_b32 v6, 1")
    o(f"    v_cmp_gt_u32 s[30:31], {CH - 6 * 512}, v0")
    o("    s_movk_i32 s90, 1986")
    o("    s_movk_i32 s91, 33")
    o("    v_lshrrev_b32 v12, 6, v0")
    if "k1b" not in FLAGS:
        o("    s_barrier")
    else:
        o("    s_nop 0")
    o("    v_readfirstlane_b32 s92, v12")
    for i in range(NI):
        d, s_, b = 80 + i, 96 + i, R(i) + 3
        o(f"    s_waitcnt vmcnt({2 * NI - 1 - i + NI})")
        o(f"    v_mul_u32_u24 v{b}, s90, v{d}")
        o(f"    v_lshrrev_b32 v{b}, 16, v{b}")
        o(f"    v_mul_u32_u24 v7, s91, v{b}")
        o(f"    v_sub_u32 v{d}, v{d}, v7")
        o(f"    v_lshlrev_b32 v{b}, 2, v{b}")
        if i == NI - 1:
            o("    s_mov_b64 exec, s[30:31]")
        o(f"    ds_add_rtn_u32 v{112 + i}, v{b}, v6")
        if i == NI - 1:
            o("    s_mov_b64 exec, -1")
    st1(1)
    if "k1b" in FLAGS:
        for i in range(NI):
            o(f"    v_lshlrev_b32 v{R(i) + 2}, 2, v{80 + i}")
    else:
        o(f"    s_waitcnt vmcnt({NI})")
        for i in range(NI):
            o(f"    v_lshlrev_b32 v{80 + i}, 2, v{80 + i}")
            o(f"    v_lshl_or_b32 v{R(i) + 2}, v{96 + i}, 9, v{80 + i}")
    o("    s_waitcnt lgkmcnt(0)")
    o("    s_barrier")
    st1(2)
    o("    ds_read_b32 v8, v2")
    o("    s_waitcnt lgkmcnt(0)")
    o("    v_mov_b32 v11, v8")
    o("    s_nop 1")
    for sh in (1, 2, 4, 8):
        o(f"    v_add_u32_dpp v11, v11, v11 row_shr:{sh} row_mask:0xf bank_mask:0xf bound_ctrl:0")
        o("    s_nop 1")
    o("    v_add_u32_dpp v11, v11, v11 row_bcast:15 row_mask:0xa bank_mask:0xf")
    o("    s_nop 1")
    o("    v_add_u32_dpp v11, v11, v11 row_bcast:31 row_mask:0xc bank_mask:0xf")
    o("    s_nop 1")
    o("    v_readlane_b32 s93, v11, 63")
    o("    s_lshl_b32 s94, s92, 2")
    o("    s_add_u32 s94, s94, 2048")
    o("    v_mov_b32 v13, s94")
    o("    v_mov_b32 v14, s93")
    o("    s_mov_b64 exec, 1")
    o("    ds_write_b32 v13, v14")
    o("    s_mov_b64 exec, -1")
    o("    s_waitcnt lgkmcnt(0)")
    o("    s_barrier")
    o("    v_and_b32 v13, 7, v0")
    o("    v_lshlrev_b32 v14, 2, v13")
    o("    ds_read_b32 v4, v14 offset:2048")
    o("    v_sub_u32 v11, v11, v8")
    o("    v_cmp_gt_u32 vcc, s92, v13")
    o("    s_waitcnt lgkmcnt(0)")
    o("    v_cndmask_b32 v4, 0, v4, vcc")
    o("    s_nop 1")
    for sh in (1, 2, 4):
        o(f"    v_add_u32_dpp v4, v4, v4 row_shr:{sh} row_mask:0xf bank_mask:0xf bound_ctrl:0")
        o("    s_nop 1")
    o("    v_readlane_b32 s93, v4, 7")
    o("    s_nop 1")
    o("    v_add_u32 v4, s93, v11")
    o("    ds_write_b32 v2, v4")
    o("    v_lshl_or_b32 v6, v4, 16, v8")
    o("    v_lshlrev_b32 v12, 9, v0")
    o("    s_lshl_b32 s94, s2, 2")
    o("    buffer_store_dword v6, v12, s[48:51], s94 offen")
    o("    s_waitcnt lgkmcnt(0)")
    o("    s_barrier")
    st1(3)
    for i in range(NI):
        o(f"    ds_read_b32 v{80 + i}, v{R(i) + 3}")
    o(f"    v_mov_b32 v5, {L_R}")
    o("    s_waitcnt vmcnt(1)")
    if "k1b" in FLAGS:
        for i in range(NI):
            o(f"    v_lshl_or_b32 v{R(i) + 2}, v{96 + i}, 9, v{R(i) + 2}")
    for i in range(NI):
        o(f"    s_waitcnt lgkmcnt({NI - 1 - i + 2 * i})")
        o(f"    v_add_u32 v{80 + i}, v{80 + i}, v{112 + i}")
        o(f"    v_mad_u32_u24 v{80 + i}, v{80 + i}, 12, v5")
        if i == NI - 1:
            o("    s_mov_b64 exec, s[30:31]")
        o(f"    ds_write2_b32 v{80 + i}, v{R(i)}, v{R(i) + 1} offset0:{L_R // 4 % 256 if False else 0} offset1:1")
        o(f"    ds_write_b32 v{80 + i}, v{R(i) + 2} offset:8")
    o("    s_mov_b64 exec, -1")
    o("    v_lshlrev_b32 v3, 4, v0")
    o("    s_waitcnt lgkmcnt(0)")
    o("    s_barrier")
    for i in range(5):
        o(f"    ds_read_b128 v[{16 + 4 * i}:{19 + 4 * i}], v3 offset:{L_R + 8192 * i}")
    for i in range(5):
        o(f"    s_movk_i32 s{56 + i}, {8192 * i}" if 8192 * i < 32768 else f"    s_mov_b32 s{56 + i}, {8192 * i}")
    for i in range(5):
        o(f"    s_waitcnt lgkmcnt({4 - i})")
        o(f"    buffer_store_dwordx4 v[{16 + 4 * i}:{19 + 4 * i}], v3, s[44:47], s{56 + i} offen{SC}")
    st1(4)
    st1_flush()
    o("    s_endpgm")
    o("K1_gemm:")
    o(f"    s_sub_u32 s2, s2, {W}")
    if "xmap" in FLAGS:
        o("    s_lshr_b32 s28, s2, 4")
        o("    s_lshl_b32 s28, s28, 3")
        o("    s_and_b32 s29, s2, 7")
        o("    s_add_u32 s28, s28, s29")
        o(f"    s_cmp_ge_u32 s28, {NGW + 1}")
        o("    s_cbranch_scc1 K1_done0")
        o("    s_bfe_u32 s29, s2, 0x10003")
        o("    s_lshl_b32 s2, s28, 1")
        o("    s_add_u32 s2, s2, s29")
    o("    v_lshrrev_b32 v1, 6, v0")
    o("    v_and_b32 v2, 15, v0")
    o("    v_bfe_u32 v3, v0, 4, 2")
    o("    v_readfirstlane_b32 s3, v1")
    o("    v_and_b32 v8, 63, v0")
    o("    v_lshlrev_b32 v8, 4, v8")
    o("    s_and_b32 s28, s2, 1")
    if "swp" in FLAGS:
        o("    s_bfe_u32 s29, s2, 0x10003")
        o("    s_lshl_b32 s29, s29, 2")
        o("    s_xor_b32 s3, s3, s29")
    o("    s_lshr_b32 s29, s3, 2")
    o("    s_and_b32 s30, s3, 3")
    o("    s_waitcnt lgkmcnt(0)")
    o("    s_cmp_lt_u32 s2, 2")
    o("    s_cselect_b32 s32, s12, s14")
    o("    s_cselect_b32 s33, s13, s15")
    o("    s_cselect_b32 s36, s18, s20")
    o("    s_cselect_b32 s37, s19, s21")
    o("    s_cmp_eq_u32 s29, 0")
    o("    s_cselect_b32 s32, s32, s36")
    o("    s_cselect_b32 s33, s33, s37")
    o("    s_mov_b32 s34, 32768")
    o("    s_mov_b32 s35, 0x00020000")
    srd(40, 4, 5, N * 256)
    srd(44, 26, 27, (DUMMY_ROW + 2) * 512, OFF_BH)
    srd(48, 26, 27, 65536 + 1024, OFF_FR)
    o("    s_lshl_b32 s31, s28, 7")
    o("    v_lshlrev_b32 v4, 11, v3")
    o("    v_lshl_add_u32 v4, v2, 3, v4")
    o("    v_add_u32 v4, s31, v4")
    o("    s_lshl_b32 s31, s30, 13")
    WT = 208
    for i in range(8):
        o(f"    buffer_load_dwordx2 v[{WT + 2 * i}:{WT + 2 * i + 1}], v4, s[32:35], s31 offen offset:{256 * i}")
    o("    v_lshlrev_b32 v5, 8, v2")
    o("    v_lshl_add_u32 v5, v3, 4, v5")
    o("    s_sub_u32 s52, s2, 2")
    o("    s_lshr_b32 s52, s52, 1")
    o(f"    s_mul_i32 s52, s52, {8 * TPW}")
    o(f"    s_mul_i32 s53, s3, {TPW}")
    o("    s_add_u32 s52, s52, s53")
    o("    s_lshl_b32 s53, s52, 12")
    XB = [144, 160]
    ACC = 176
    o("    s_cmp_lt_u32 s2, 2")
    o("    s_cbranch_scc1 K1_nox")
    if "k1b" in FLAGS:
        o("    s_barrier")
    XE = 1 if "k1b" in FLAGS else TPW
    def xld(t):
        o(f"    s_add_u32 s55, s53, {4096 * t}")
        for s in range(4):
            o(f"    buffer_load_dwordx4 v[{XB[t] + 4 * s}:{XB[t] + 4 * s + 3}], v5, s[40:43], s55 offen offset:{64 * s}")
    for t in range(XE):
        xld(t)
    o("K1_nox:")
    o("    s_mov_b32 s60, 0x05040100")
    o("    s_mov_b32 s61, 0x07060302")
    o(f"    s_mov_b32 s62, {hex(NLOG2E)}")
    o("    s_mov_b32 s64, 0xffff0000")
    o("    s_brev_b32 s65, 1")
    o("    s_lshl_b32 s31, s28, 8")
    o("    v_lshlrev_b32 v6, 11, v3")
    o("    v_lshl_add_u32 v6, v2, 4, v6")
    o("    v_add_u32 v6, s31, v6")
    o("    s_cmp_lt_u32 s2, 2")
    o("    s_cbranch_scc1 K1_w0")
    o(f"    s_waitcnt vmcnt({4 * XE})")
    o("    s_branch K1_w1")
    o("K1_w0:")
    o("    s_waitcnt vmcnt(0)")
    o("K1_w1:")
    st1(1)
    FD = 224
    for kp in range(4):
        a0, a1 = WT + 4 * kp, WT + 4 * kp + 1
        b0, b1 = WT + 4 * kp + 2, WT + 4 * kp + 3
        o(f"    v_perm_b32 v{FD + 0 + kp}, v{b0}, v{a0}, s60")
        o(f"    v_perm_b32 v{FD + 4 + kp}, v{b0}, v{a0}, s61")
        o(f"    v_perm_b32 v{FD + 8 + kp}, v{b1}, v{a1}, s60")
        o(f"    v_perm_b32 v{FD + 12 + kp}, v{b1}, v{a1}, s61")
    o("    s_cmp_lt_u32 s2, 2")
    o("    s_cbranch_scc0 K1_g2")
    o("    s_lshl_b32 s54, s29, 1")
    o("    s_add_u32 s54, s54, s28")
    o("    s_lshl_b32 s54, s54, 14")
    o("    s_lshl_b32 s55, s30, 10")
    o("    s_add_u32 s54, s54, s55")
    for u in range(4):
        o(f"    s_add_u32 s55, s54, {4096 * u}")
        o(f"    buffer_store_dwordx4 v[{FD + 4 * u}:{FD + 4 * u + 3}], v8, s[48:51], s55 offen")
    o("    s_cmp_lg_u32 s3, 1")
    o("    s_cbranch_scc1 K1_nwc")
    srd(52, 16, 17, 1024)
    o("    s_lshl_b32 s31, s28, 7")
    o("    v_lshlrev_b32 v9, 3, v2")
    o("    v_lshl_add_u32 v9, v3, 1, v9")
    o("    v_add_u32 v9, s31, v9")
    for k in range(4):
        o(f"    buffer_load_ushort v{16 + k}, v9, s[52:55], 0 offen offset:{256 * k}")
    o("    s_lshl_b32 s31, s28, 9")
    o("    s_add_u32 s31, s31, 65536")
    o("    v_lshrrev_b32 v9, 1, v8")
    o("    s_waitcnt vmcnt(0)")
    for k in range(4):
        o(f"    v_lshlrev_b32 v{16 + k}, 16, v{16 + k}")
        o(f"    v_mul_f32 v{16 + k}, s62, v{16 + k}")
    o("    v_cvt_pk_bf16_f32 v20, v16, v17")
    o("    v_cvt_pk_bf16_f32 v21, v18, v19")
    o("    buffer_store_dwordx2 v[20:21], v9, s[48:51], s31 offen")
    o("    s_endpgm")
    o("K1_nwc:")
    o("    s_cmp_lg_u32 s2, 0")
    o("    s_cbranch_scc1 K1_done")
    o("    v_cmp_gt_u32 vcc, 64, v0")
    o("    s_and_saveexec_b64 s[30:31], vcc")
    o("    s_cbranch_execz K1_done")
    o("    v_lshlrev_b32 v3, 4, v0")
    o(f"    v_add_u32 v3, {DUMMY_ROW * 512}, v3")
    o("    v_mov_b32 v8, 0x4f00")
    o("    v_mov_b32 v9, 0x4f00")
    o("    v_mov_b32 v10, 0x4f00")
    o("    v_mov_b32 v11, 0x4f00")
    o("    buffer_store_dwordx4 v[8:11], v3, s[44:47], 0 offen")
    o("    s_endpgm")
    o("K1_g2:")
    o("    s_lshl_b32 s54, s3, 12")
    o("    v_add_u32 v9, s54, v8")
    for u in range(4):
        o(f"    ds_write_b128 v9, v[{FD + 4 * u}:{FD + 4 * u + 3}] offset:{1024 * u}")
    o("    s_waitcnt lgkmcnt(0)")
    o("    s_barrier")
    st1(2)
    for g in range(8):
        for u in range(4):
            r = 16 + 16 * g + 4 * u
            o(f"    ds_read_b128 v[{r}:{r + 3}], v8 offset:{4096 * g + 1024 * u}")
    for t in range(XE, TPW):
        xld(t)
    TMP = [208, 224]
    for t in range(TPW):
        xb = XB[t]
        o(f"    s_add_u32 s54, s52, {t}")
        o(f"    s_cmp_ge_u32 s54, {NTILES}")
        o("    s_cbranch_scc1 K1_done")
        o(f"    s_waitcnt vmcnt({4 * (TPW - 1 - t) + 4 * t})")
        for s in range(4):
            for m in range(2):
                if t == 0:
                    g = 4 * m + s
                    o(f"    s_waitcnt lgkmcnt({min(15, 32 - 4 * (g + 1))})")
                for u in range(4):
                    a = ACC + 16 * m + 4 * u
                    f = 16 + 16 * (4 * m + s) + 4 * u
                    c = "0" if s == 0 else f"v[{a}:{a + 3}]"
                    o(f"    v_mfma_f32_16x16x32_bf16 v[{a}:{a + 3}], v[{xb + 4 * s}:{xb + 4 * s + 3}], v[{f}:{f + 3}], {c}")
        o("    s_lshl_b32 s63, s54, 13")
        st1(3 + t)
        o("    s_nop 7")
        for j in range(4):
            tb = TMP[t] + 4 * j
            for u in range(4):
                o(f"    v_mul_f32 v{ACC + 4 * u + j}, s62, v{ACC + 4 * u + j}")
            o(f"    v_cvt_pk_bf16_f32 v10, v{ACC + j}, v{ACC + 4 + j}")
            o(f"    v_cvt_pk_bf16_f32 v12, v{ACC + 8 + j}, v{ACC + 12 + j}")
            o("    v_lshrrev_b32 v11, 16, v10")
            o("    v_and_b32 v10, 0xffff, v10")
            o("    v_lshrrev_b32 v13, 16, v12")
            o("    v_and_b32 v12, 0xffff, v12")
            for u in range(4):
                h = ACC + 16 + 4 * u + j
                b = 10 + u
                o(f"    v_and_b32 v14, 0x7fffffff, v{h}")
                o("    v_add_u32 v14, 0x8000, v14")
                o(f"    v_sub_u32 v14, v14, v{b} clamp")
                o(f"    v_and_or_b32 v14, v14, s64, v{b}")
                o(f"    v_and_or_b32 v{tb + u}, v{h}, s65, v14")
            o(f"    buffer_store_dwordx4 v[{tb}:{tb + 3}], v6, s[44:47], s63 offen offset:{512 * j}")
    o("K1_done:")
    st1_flush()
    o("K1_done0:")
    o("    s_endpgm")

R = 4
V_L = 0
V_E = 16
V_G = 24
V_WC = 32
V_AN = 34
V_A = 36
V_NUM = 40
V_DEN = 44
V_OADDR = 48
V_EADDR = 49
V_CNT = 50
V_TK = 51
V_OFFN = 52
V_LOFFN = 53
V_T0 = 54
V_OFF4 = 58
V_S = 70
V_LOFF = 74
V_FOFF = 75
V_OB = 76
V_EB = 77
V_SCRW = 78
V_SCRR = 79
K2_VGPR = 80
S_ONE = 56
S_CNODE = 60
S_CREM = 64
S_LREM = 67
S_FIFO = 68
S_FSH = 70
S_SKIP = 76

def M1(s, g):
    if "nomfma" in FLAGS: return
    L = V_L + 4 * s
    G = V_G + 4 * g
    o(f"    v_mfma_f32_16x16x32_bf16 v[{G}:{G+3}], v[{V_S}:{V_S+3}], v[{L}:{L+3}], v[{V_A}:{V_A+3}]")

def M2(s, g):
    if "nomfma" in FLAGS: return
    Ee = V_E + 2 * s
    G = V_G + 4 * g
    o(f"    v_mfma_f32_16x16x16_bf16 v[{G}:{G+3}], v[{Ee}:{Ee+1}], v[{V_WC}:{V_WC+1}], v[{G}:{G+3}]")

def Va(g):
    if "novalu" in FLAGS:
        o("    s_nop 5"); return
    G = V_G + 4 * g
    for t in range(4):
        o(f"    v_exp_f32 v{G+t}, v{G+t}")
    for t in (0, 2):
        o(f"    v_pk_add_f32 v[{G+t}:{G+t+1}], v[{G+t}:{G+t+1}], s[{S_ONE}:{S_ONE+1}]")

def Vb(s, g):
    if "novalu" in FLAGS:
        o("    s_nop 7"); return
    L = V_L + 4 * s
    G = V_G + 4 * g
    for t in range(4):
        o(f"    v_rcp_f32 v{G+t}, v{G+t}")
    for t in (0, 2):
        o(f"    v_pk_fma_f32 v[{V_NUM+t}:{V_NUM+t+1}], v[{G+t}:{G+t+1}], v[{L+t}:{L+t+1}], v[{V_NUM+t}:{V_NUM+t+1}]")
    for t in (0, 2):
        o(f"    v_pk_add_f32 v[{V_DEN+t}:{V_DEN+t+1}], v[{V_DEN+t}:{V_DEN+t+1}], v[{G+t}:{G+t+1}]")

def steps_of(sdst):
    o(f"    s_add_u32 s{sdst}, s{sdst}, 3")
    o(f"    s_lshr_b32 s{sdst}, s{sdst}, 2")
    o(f"    s_max_u32 s{sdst}, s{sdst}, 1")
    o(f"    s_cmp_gt_u32 s{sdst}, {CAP // 4}")
    o(f"    s_cselect_b32 s{sdst}, 1, s{sdst}")

def ticket():
    o(f"    v_mov_b32 v{V_T0}, {L_TICKET}")
    o(f"    v_mov_b32 v{V_T0+1}, 1")
    o("    s_mov_b64 exec, 1")
    o(f"    ds_add_rtn_u32 v{V_TK}, v{V_T0}, v{V_T0+1}")
    o("    s_mov_b64 exec, -1")

LS_ID = 0
OOL = []
def lswitch():
    global LS_ID
    LS_ID += 1
    o(f"    v_readfirstlane_b32 s71, v{V_TK}")
    o("    s_nop 3")
    if "rep" in FLAGS:
        o("    s_mul_i32 s72, s71, 1986")
        o("    s_lshr_b32 s72, s72, 16")
        o("    s_mul_i32 s72, s72, 33")
        o("    s_sub_u32 s72, s71, s72")
        o(f"    s_cmp_ge_u32 s71, {33 * 41}")
        o("    s_cselect_b32 s71, 63, s72")
    o("    s_min_u32 s71, s71, 63")
    o(f"    v_readlane_b32 s{S_LREM}, v{V_CNT}, s71")
    o("    s_mov_b32 s73, 0")
    o("    s_mov_b32 s72, s71")
    o(f"    s_lshl_b64 s[72:73], s[72:73], s{S_FSH}")
    o(f"    s_or_b64 s[{S_FIFO}:{S_FIFO+1}], s[{S_FIFO}:{S_FIFO+1}], s[72:73]")
    o(f"    s_add_u32 s{S_FSH}, s{S_FSH}, 8")
    o("    s_cmp_ge_u32 s71, s51")
    o(f"    s_cbranch_scc1 K2_lend{LS_ID}")
    steps_of(S_LREM)
    o(f"    s_sub_u32 s{S_LREM}, s{S_LREM}, 1")
    o("    s_lshl_b32 s72, s71, 8")
    o(f"    v_add_u32 v{V_OADDR}, s72, v{V_OB}")
    o("    s_lshl_b32 s72, s71, 9")
    o(f"    v_add_u32 v{V_EADDR}, s72, v{V_EB}")
    o("    s_lshl_b32 s72, s71, 2")
    o(f"    v_subrev_u32 v{V_LOFFN}, s72, v{V_LOFF}")
    ticket()
    o(f"    s_branch K2_lok{LS_ID}")
    o(f"K2_lend{LS_ID}:")
    o(f"    s_mov_b32 s{S_LREM}, 0x7fffffff")
    o(f"K2_lok{LS_ID}:")

LI_ID = 0
def lissue(j):
    global LI_ID
    LI_ID += 1
    lid = LI_ID
    o("    s_waitcnt lgkmcnt(0)")
    o(f"    v_add_u32 v{V_OFFN}, v{V_OFFN}, v{V_LOFFN}")
    o("    s_mov_b64 exec, s[40:41]")
    o(f"    ds_read_b64 v[{V_E+2*j}:{V_E+2*j+1}], v{V_EADDR}")
    o("    s_mov_b64 exec, -1")
    if "noload" not in FLAGS:
        o(f"    buffer_load_dwordx4 v[{V_L+4*j}:{V_L+4*j+3}], v{V_OFFN}, s[24:27], 0 offen")
    o(f"    s_sub_u32 s{S_LREM}, s{S_LREM}, 1")
    o(f"    s_cbranch_scc1 K2_lsw{lid}")
    if "bench" in FLAGS:
        o(f"    v_add_u32 v{V_T0}, 4, v{V_OADDR}")
        o(f"    v_add_u32 v{V_T0+1}, 8, v{V_EADDR}")
    else:
        o(f"    v_add_u32 v{V_OADDR}, 4, v{V_OADDR}")
        o(f"    v_add_u32 v{V_EADDR}, 8, v{V_EADDR}")
    o(f"K2_lret{lid}:")
    o(f"    ds_read_b32 v{V_OFFN}, v{V_OADDR}")
    def ool():
        o(f"K2_lsw{lid}:")
        lswitch()
        o(f"    s_branch K2_lret{lid}")
    OOL.append(ool)

def place(e0, w, rank, t0, t1):
    o(f"    v_mul_u32_u24 v{t1}, 65, v{rank}")
    o(f"    v_and_b32 v{t1}, 0xfc, v{t1}")
    o(f"    v_lshl_add_u32 v{t1}, v{t0}, 6, v{t1}")
    o(f"    v_lshlrev_b32 v{t0}, 1, v{t1}")
    if "small" in FLAGS:
        o(f"    v_and_b32 v{w}, 0x7ffff, v{w}")
    o(f"    ds_write_b32 v{t1}, v{w} offset:{L_OFFS}")
    o(f"    ds_write_b64 v{t0}, v[{e0}:{e0+1}] offset:{L_E}")

def read_an(sreg):
    o(f"    s_lshl_b32 s65, s{sreg}, 7")
    o("    s_add_u32 s65, s65, s75")
    o(f"    v_and_b32 v{V_AN}, 0xfffffff8, v{V_FOFF}")
    o(f"    v_add_u32 v{V_AN}, s65, v{V_AN}")
    o(f"    ds_read_b64 v[{V_AN}:{V_AN+1}], v{V_AN}")

def unpack_a():
    o(f"    v_lshlrev_b32 v{V_A}, 16, v{V_AN}")
    o(f"    v_and_b32 v{V_A+1}, 0xffff0000, v{V_AN}")
    o(f"    v_lshlrev_b32 v{V_A+2}, 16, v{V_AN+1}")
    o(f"    v_and_b32 v{V_A+3}, 0xffff0000, v{V_AN+1}")

NS_ID = 0
PR = [tuple(int(x) for x in t.split(":")) for t in os.environ.get("PR", "0:3,8:2,16:1,24:0").split(",")]
def prio():
    global NS_ID
    NS_ID += 1
    if "noprio" in FLAGS: return
    for th, p in PR[1:]:
        o(f"    s_cmp_lt_u32 s{S_CNODE}, {th}")
        o(f"    s_cbranch_scc1 K2_pr{NS_ID}")
        o(f"    s_setprio {p}")
    o(f"K2_pr{NS_ID}:")

def zero_acc():
    for t in range(4):
        o(f"    v_mov_b32 v{V_NUM + t}, 0")
        o(f"    v_mov_b32 v{V_DEN + t}, 0")

def cpop(endlabel):
    o(f"    s_and_b32 s{S_CNODE}, s{S_FIFO}, 0xff")
    o(f"    s_lshr_b64 s[{S_FIFO}:{S_FIFO+1}], s[{S_FIFO}:{S_FIFO+1}], 8")
    o(f"    s_sub_u32 s{S_FSH}, s{S_FSH}, 8")
    o(f"    s_cmp_ge_u32 s{S_CNODE}, s51")
    o(f"    s_cbranch_scc1 {endlabel}")
    o(f"    v_readlane_b32 s{S_CREM}, v{V_CNT}, s{S_CNODE}")
    zero_acc()
    prio()
    steps_of(S_CREM)
    o(f"    s_cselect_b32 s{S_SKIP}, 1, 0")

def peek_an():
    o(f"    s_and_b32 s71, s{S_FIFO}, 0xff")
    o("    s_min_u32 s71, s71, 32")
    read_an(71)

def finalize():
    T = V_T0
    o(f"    s_lshl_b32 s65, s{S_CNODE}, 7")
    o("    s_add_u32 s65, s65, s77")
    o(f"    s_mul_i32 s62, s{S_CNODE}, {XSTR}")
    o(f"    s_add_u32 s62, s62, {L_X}")
    o(f"    ds_write_b128 v{V_SCRW}, v[{V_NUM}:{V_NUM+3}]")
    o(f"    ds_read2st64_b32 v[{V_NUM}:{V_NUM+1}], v{V_SCRR} offset0:0 offset1:1")
    o(f"    ds_read2st64_b32 v[{V_NUM+2}:{V_NUM+3}], v{V_SCRR} offset0:2 offset1:3")
    o(f"    ds_write_b128 v{V_SCRW}, v[{V_DEN}:{V_DEN+3}]")
    o(f"    ds_read2st64_b32 v[{V_DEN}:{V_DEN+1}], v{V_SCRR} offset0:0 offset1:1")
    o(f"    ds_read2st64_b32 v[{V_DEN+2}:{V_DEN+3}], v{V_SCRR} offset0:2 offset1:3")
    o(f"    v_add_u32 v{T}, s65, v{V_FOFF}")
    o(f"    v_add_u32 v{T+2}, s62, v{V_FOFF}")
    o(f"    v_mov_b32 v{T+1}, 0")
    o(f"    v_mov_b32 v{T+3}, 0")
    o(f"    ds_read_u16_d16_hi v{T+1}, v{T}")
    o(f"    ds_read_u16_d16_hi v{T+3}, v{T+2}")
    o("    s_waitcnt lgkmcnt(0)")
    Nn, Dd = V_NUM, V_DEN
    o(f"    v_pk_add_f32 v[{Nn}:{Nn+1}], v[{Nn}:{Nn+1}], v[{Nn+2}:{Nn+3}]")
    o(f"    v_pk_add_f32 v[{Dd}:{Dd+1}], v[{Dd}:{Dd+1}], v[{Dd+2}:{Dd+3}]")
    o(f"    v_add_f32 v{Nn}, v{Nn}, v{Nn+1}")
    o(f"    v_add_f32 v{Dd}, v{Dd}, v{Dd+1}")
    o(f"    v_add_f32 v{Dd}, s66, v{Dd}")
    o(f"    v_rcp_f32 v{Dd}, v{Dd}")
    o("    s_nop 0")
    o(f"    v_fma_f32 v{Nn}, v{Nn}, v{Dd}, v{T+1}")
    o(f"    v_max_f32 v{Nn}, 0, v{Nn}")
    o(f"    v_add_f32 v{Nn}, v{Nn}, v{T+3}")
    o(f"    v_cvt_pk_bf16_f32 v{Nn}, v{Nn}, v{Nn}")
    o(f"    ds_write_b16 v{T}, v{Nn}")

def process_simple(tag, sn):
    o(f"    s_lshl_b32 s72, s{S_CNODE}, 8")
    o(f"    v_add_u32 v{V_OADDR}, s72, v{V_OB}")
    o(f"    s_lshl_b32 s72, s{S_CNODE}, 9")
    o(f"    v_add_u32 v{V_EADDR}, s72, v{V_EB}")
    o(f"    s_lshl_b32 s72, s{S_CNODE}, 2")
    o(f"    v_subrev_u32 v{V_LOFFN}, s72, v{V_LOFF}")
    o(f"K2_loop{tag}:")
    o(f"    ds_read_b128 v[{V_OFF4}:{V_OFF4+3}], v{V_OADDR}")
    o("    s_mov_b64 exec, s[40:41]")
    for s in range(4):
        o(f"    ds_read_b64 v[{V_E+2*s}:{V_E+2*s+1}], v{V_EADDR} offset:{8*s}")
    o("    s_mov_b64 exec, -1")
    o("    s_waitcnt lgkmcnt(4)")
    for s in range(4):
        o(f"    v_add_u32 v{V_OFF4+s}, v{V_OFF4+s}, v{V_LOFFN}")
    for s in range(4):
        o(f"    buffer_load_dwordx4 v[{V_L+4*s}:{V_L+4*s+3}], v{V_OFF4+s}, s[24:27], 0 offen")
    o(f"    v_add_u32 v{V_OADDR}, 16, v{V_OADDR}")
    o(f"    v_add_u32 v{V_EADDR}, 32, v{V_EADDR}")
    o("    s_waitcnt vmcnt(0) lgkmcnt(0)")
    for s in range(4):
        M1(s, 0)
        o("    s_nop 5")
        M2(s, 0)
        o("    s_nop 7")
        Va(0)
        Vb(s, 0)
        o(f"    s_sub_u32 s{sn}, s{sn}, 1")
        o(f"    s_cmp_eq_u32 s{sn}, 0")
        o(f"    s_cbranch_scc1 K2_pdone{tag}")
    o(f"    s_branch K2_loop{tag}")
    o(f"K2_pdone{tag}:")

TL = "tl" in FLAGS
def stamp(i):
    if not TL: return
    o("    s_waitcnt lgkmcnt(0)")
    o(f"    s_memrealtime s[{82+2*i}:{83+2*i}]")
    o("    s_waitcnt lgkmcnt(0)")
XS = dict((t.split(":")[0], int(t.split(":")[1])) for t in os.environ.get("XS", "karg:5,T:1,bar1:2,placed:3,bar2:4").split(","))
def xs(name):
    if name in XS: stamp(XS[name])
def stamp_flush():
    if not TL: return
    o("    s_waitcnt vmcnt(0) lgkmcnt(0)")
    o("    s_memrealtime s[94:95]")
    o("    s_memtime s[96:97]")
    o("    s_waitcnt lgkmcnt(0)")
    srd(20, 10, 11, 0x100000, 0x4000000)
    o("    s_lshl_b32 s98, s2, 3")
    o("    s_add_u32 s98, s98, s48")
    o("    s_lshl_b32 s98, s98, 6")
    for i in range(8):
        o(f"    v_mov_b32 v{i}, s{80+2*i}")
    o("    v_mov_b32 v8, s96")
    o("    s_getreg_b32 s99, hwreg(HW_REG_HW_ID)")
    o("    s_getreg_b32 s100, hwreg(HW_REG_XCC_ID)")
    o("    v_mov_b32 v9, s99")
    o("    v_mov_b32 v10, s100")
    o("    v_mov_b32 v11, 0")
    o("    v_mov_b32 v12, 0")
    o("    s_mov_b64 exec, 1")
    o("    buffer_store_dwordx4 v[0:3], v12, s[20:23], s98 offen")
    o("    buffer_store_dwordx4 v[4:7], v12, s[20:23], s98 offen offset:16")
    o("    buffer_store_dwordx4 v[8:11], v12, s[20:23], s98 offen offset:32")
    o("    s_mov_b64 exec, -1")

def lds_fill(base, nbytes, vdata):
    full = nbytes // 8192
    for k in range(full):
        o(f"    ds_write_b128 v10, v[{vdata}:{vdata+3}] offset:{base + 8192 * k}")
    rem = nbytes - full * 8192
    if rem:
        o(f"    v_cmp_gt_u32 vcc, {rem // 16}, v0")
        o("    s_and_saveexec_b64 s[44:45], vcc")
        o(f"    ds_write_b128 v10, v[{vdata}:{vdata+3}] offset:{base + 8192 * full}")
        o("    s_mov_b64 exec, s[44:45]")

def k2_full():
    o(".globl gk2_kernel")
    o(".p2align 8")
    o(".type gk2_kernel,@function")
    o("gk2_kernel:")
    if "k2empty" in FLAGS:
        o("    s_endpgm")
    o(f"    s_cmp_ge_u32 s2, {2 * NB}")
    o("    s_cbranch_scc1 K2_done0")
    if TL:
        o("    s_memtime s[80:81]")
        stamp(0)
    if "noprio" not in FLAGS:
        o("    s_setprio 3")
    o("    s_load_dwordx2 s[4:5], s[0:1], 0")
    o("    s_load_dwordx2 s[8:9], s[0:1], 72")
    o("    s_load_dwordx2 s[10:11], s[0:1], 88")
    o("    s_and_b32 s46, s2, 1")
    o("    s_bfe_u32 s47, s2, 0x20001")
    o("    s_mul_i32 s47, s47, 95")
    o("    s_lshr_b32 s48, s2, 3")
    o("    s_add_u32 s47, s47, s48")
    NRC = 5
    o("    v_and_b32 v1, 63, v0")
    o("    v_lshrrev_b32 v2, 6, v0")
    o("    v_and_b32 v3, 15, v0")
    o("    v_bfe_u32 v4, v0, 4, 2")
    o("    v_readfirstlane_b32 s48, v2")
    o("    v_lshrrev_b32 v6, 2, v0")
    o("    v_lshlrev_b32 v7, 2, v6")
    o("    v_lshlrev_b32 v10, 4, v0")
    o("    v_lshlrev_b32 v8, 4, v1")
    o("    s_lshl_b32 s49, s47, 9")
    o(f"    s_mul_i32 s50, s47, {NPB}")
    o("    v_cmp_gt_u32 s[44:45], 16, v0")
    o("    s_lshl_b32 s59, s50, 8")
    o("    s_add_u32 s60, s59, 8192")
    o("    s_and_b32 s56, s48, 1")
    o("    s_lshr_b32 s57, s48, 1")
    o("    s_lshl_b32 s58, s56, 1")
    o("    s_add_u32 s58, s58, s46")
    o("    s_lshl_b32 s58, s58, 2")
    o("    s_add_u32 s58, s58, s57")
    o("    s_lshl_b32 s58, s58, 12")
    SL = [int(x) for x in os.environ.get("SL", "0,0").split(",")]
    if SL[0]:
        o("    s_cmp_lt_u32 s2, 256")
        o("    s_cbranch_scc1 K2_nsl")
        o(f"    s_sleep {SL[0]}")
        o("    s_cmp_lt_u32 s2, 512")
        o("    s_cbranch_scc1 K2_nsl")
        o(f"    s_sleep {SL[1]}")
        o("K2_nsl:")
    o("    s_waitcnt lgkmcnt(0)")
    xs("karg")
    srd(12, 10, 11, NB * W * 4, OFF_T)
    o("    buffer_load_dword v5, v7, s[12:15], s49 offen")
    srd(36, 4, 5, N * 256)
    o("    buffer_load_dwordx4 v[32:35], v10, s[36:39], s59 offen")
    srd(28, 10, 11, 65536 + 1024, OFF_FR)
    o("    s_cmp_lg_u32 s48, 0")
    o("    s_cbranch_scc1 K2_nx2")
    o("    s_mov_b64 exec, s[44:45]")
    o("    buffer_load_dwordx4 v[36:39], v10, s[36:39], s60 offen")
    o("    s_mov_b64 exec, -1")
    o("K2_nx2:")
    o("    s_cmp_lg_u32 s48, 7")
    o("    s_cbranch_scc1 K2_nwc")
    o("    s_lshl_b32 s61, s46, 9")
    o("    s_add_u32 s61, s61, 65536")
    o("    v_lshlrev_b32 v9, 3, v1")
    o("    buffer_load_dwordx2 v[36:37], v9, s[28:31], s61 offen")
    o("K2_nwc:")
    FR = 16
    FRE = "frlate" not in FLAGS
    def frloads():
        for s in range(4):
            o(f"    buffer_load_dwordx4 v[{FR + 4 * s}:{FR + 4 * s + 3}], v8, s[28:31], s58 offen offset:{1024 * s}")
    if FRE: frloads()
    for r in range(12, 16):
        o(f"    v_mov_b32 v{r}, 0")
    for r in range(64, 68):
        o(f"    v_mov_b32 v{r}, {hex(DUMMY_OFF)}")
    lds_fill(0, 512, 12)
    xs("ld")
    if "nofill" not in FLAGS:
        lds_fill(L_E, NPB * CAP * 8, 12)
        lds_fill(L_OFFS, NPB * CAP * 4, 64)
    srd(16, 10, 11, W * CHS, OFF_REC)
    o("    v_and_b32 v2, 3, v0")
    if "tlbA" in FLAGS:
        o(f"    v_mul_u32_u24 v6, 516, v6")
    elif "tlbB" in FLAGS:
        o(f"    v_mul_u32_u24 v6, 516, v6")
        o("    s_and_b32 s61, s2, 63")
        o(f"    s_mul_i32 s61, s61, {12 * 5504}")
        o("    v_add_u32 v6, s61, v6")
    else:
        o(f"    v_mul_u32_u24 v6, {CHS}, v6")
    xs("init")
    nf = 4 if FRE else 0
    o("    s_add_u32 s61, s48, 1")
    o("    s_and_b32 s61, s61, 6")
    o("    s_cmp_eq_u32 s61, 0")
    o("    s_cbranch_scc1 K2_tw2")
    o(f"    s_waitcnt vmcnt({1 + nf})")
    o("K2_tw2:")
    o(f"    s_waitcnt vmcnt({2 + nf})")
    xs("T")
    o("    v_lshrrev_b32 v11, 16, v5")
    if "tlbB" in FLAGS:
        o("    v_and_b32 v11, 15, v11")
    o("    v_and_b32 v5, 0xffff, v5")
    o(f"    v_add_u32 v7, v11, v2")
    o("    v_mad_u32_u24 v7, v7, 12, v6")
    RB = [48 + 4 * i for i in range(NRC)]
    MK = [68 + 2 * i for i in range(NRC)]
    for i in range(NRC):
        o(f"    v_add_u32 v11, {4 * i}, v2")
        o(f"    v_cmp_gt_u32 s[{MK[i]}:{MK[i] + 1}], v5, v11")
    ORD = [4, 3, 0, 1, 2]
    for i in ORD:
        o(f"    s_mov_b64 exec, s[{MK[i]}:{MK[i] + 1}]")
        if i >= 3:
            o(f"    s_cbranch_execz K2_nr{i}")
        o(f"    buffer_load_dwordx3 v[{RB[i]}:{RB[i] + 2}], v7, s[16:19], 0 offen offset:{48 * i}")
        if i >= 3:
            o(f"K2_nr{i}:")
    o("    s_mov_b64 exec, -1")
    if not FRE: frloads()
    srd(24, 10, 11, (DUMMY_ROW + 2) * 512, OFF_BH)
    srd(52, 8, 9, N * 256)
    o("    s_mov_b32 s40, 0x22221111")
    o("    s_mov_b32 s41, 0x88884444")
    o(f"    s_movk_i32 s42, {CAP}")
    o(f"    s_mov_b32 s43, {hex(NLOG2E)}")
    o("    s_lshl_b32 s62, s46, 7")
    o(f"    v_lshlrev_b32 v{V_FOFF}, 3, v3")
    o(f"    v_lshl_add_u32 v{V_FOFF}, v4, 1, v{V_FOFF}")
    o(f"    v_add_u32 v{V_FOFF}, s62, v{V_FOFF}")
    o(f"    s_sub_u32 s78, {L_A}, s62")
    o(f"    s_sub_u32 s79, {L_U}, s62")
    o("    s_lshl_b32 s62, s46, 8")
    o(f"    v_lshlrev_b32 v{V_LOFF}, 4, v3")
    o(f"    v_add_u32 v{V_LOFF}, s62, v{V_LOFF}")
    o(f"    v_lshlrev_b32 v{V_OB}, 6, v4")
    o(f"    v_add_u32 v{V_OB}, {L_OFFS}, v{V_OB}")
    o("    v_lshrrev_b32 v11, 2, v3")
    o(f"    v_lshlrev_b32 v{V_EB}, 7, v11")
    o(f"    v_add_u32 v{V_EB}, {L_E}, v{V_EB}")
    o("    s_lshl_b32 s62, s48, 10")
    o(f"    s_add_u32 s62, s62, {L_SCR}")
    o(f"    v_lshlrev_b32 v{V_SCRW}, 4, v1")
    o(f"    v_add_u32 v{V_SCRW}, s62, v{V_SCRW}")
    o(f"    v_lshlrev_b32 v{V_SCRR}, 4, v3")
    o(f"    v_lshl_add_u32 v{V_SCRR}, v4, 2, v{V_SCRR}")
    o(f"    v_add_u32 v{V_SCRR}, s62, v{V_SCRR}")
    o("    v_and_b32 v9, 3, v3")
    o("    v_mov_b32 v68, 0x3f80")
    o("    v_cmp_eq_u32 s[44:45], v4, v11")
    for t in range(4):
        o(f"    v_cmp_eq_u32 vcc, {t}, v9")
        o("    s_and_b64 s[62:63], s[44:45], vcc")
        o("    s_nop 0")
        o(f"    v_cndmask_b32 v{V_S + t}, 0, v68, s[62:63]")
    o(f"    s_sub_u32 s51, {N}, s50")
    o(f"    s_min_u32 s51, s51, {NPB}")
    o("    s_mov_b32 s66, 0x358637bd")
    o("    s_cmp_eq_u32 s56, 0")
    o("    s_cselect_b32 s62, s43, 1.0")
    o(f"    s_mov_b32 s63, {L_U}")
    o(f"    s_cselect_b32 s63, {L_A}, s63")
    o("    s_lshl_b32 s64, s57, 1")
    o("    s_add_u32 s63, s63, s64")
    o(f"    s_mov_b32 s{S_ONE}, 1.0")
    o(f"    s_mov_b32 s{S_ONE+1}, 1.0")
    o("    v_and_b32 v11, 0x1f0, v0")
    o("    v_add_u32 v11, v11, v10")
    o("    v_cmp_gt_u32 s[44:45], 16, v0")
    o("    v_lshlrev_b32 v8, 9, v4")
    o("    v_lshl_add_u32 v8, v3, 3, v8")
    o("    v_add_u32 v8, s63, v8")
    o(f"    v_mul_u32_u24 v9, {XSTR}, v3")
    o("    v_lshl_add_u32 v9, v4, 4, v9")
    o("    v_mov_b32 v69, 1")
    xs("const")
    o(f"    s_waitcnt vmcnt(7)")
    xs("x")
    o(f"    ds_write_b128 v11, v[32:35] offset:{L_X}")
    o("    s_cmp_lg_u32 s48, 0")
    o("    s_cbranch_scc1 K2_nx3")
    o("    s_mov_b64 exec, s[44:45]")
    o(f"    ds_write_b128 v10, v[36:39] offset:{L_X + 32 * XSTR}")
    o("    s_mov_b64 exec, -1")
    o("K2_nx3:")
    o("    s_cmp_lg_u32 s48, 7")
    o("    s_cbranch_scc1 K2_nwc3")
    o("    v_lshlrev_b32 v11, 3, v1")
    o(f"    ds_write_b64 v11, v[36:37] offset:{L_WC}")
    o("K2_nwc3:")
    o("    s_waitcnt lgkmcnt(0)")
    o("    s_barrier")
    xs("bar1")
    XA = 32
    D = 12
    def xreads(tl):
        for s in range(4):
            o(f"    ds_read_b128 v[{XA + 4 * s}:{XA + 4 * s + 3}], v9 offset:{L_X + 64 * s + 16 * XSTR * tl}")
    def tile(tl):
        for s in range(4):
            c = "0" if s == 0 else f"v[{D}:{D + 3}]"
            o(f"    v_mfma_f32_16x16x32_bf16 v[{D}:{D + 3}], v[{XA + 4 * s}:{XA + 4 * s + 3}], v[{FR + 4 * s}:{FR + 4 * s + 3}], {c}")
        if tl < 2:
            xreads(tl + 1)
            o("    s_nop 3")
        else:
            o("    s_nop 7")
        nj = 4 if tl < 2 else 1
        for j in range(nj):
            o(f"    v_mul_f32 v{D + j}, s62, v{D + j}")
        for j in range(nj):
            o(f"    v_cvt_pk_bf16_f32 v{D + j}, v{D + j}, v{D + j}")
        if tl == 2:
            o("    s_mov_b64 exec, 0xffff")
        for j in range(nj):
            o(f"    ds_write_b16 v8, v{D + j} offset:{2048 * tl + 128 * j}")
        if tl == 2:
            o("    s_mov_b64 exec, -1")
    def ranks(nyoung):
        for n_, i in enumerate(ORD):
            if i < 3:
                o(f"    s_waitcnt vmcnt({2 - i + nyoung})")
            o(f"    s_mov_b64 exec, s[{MK[i]}:{MK[i] + 1}]")
            o(f"    v_and_b32 v{10 + (n_ & 1)}, 0xfc, v{RB[i] + 2}")
            o(f"    ds_add_rtn_u32 v{RB[i] + 3}, v{10 + (n_ & 1)}, v69 offset:{L_CNT}")
        o("    s_mov_b64 exec, -1")
    def places(counted):
        for n_, i in enumerate(ORD):
            if counted:
                o(f"    s_waitcnt lgkmcnt({NRC - 1 - n_ + 2 * n_})")
            o(f"    s_mov_b64 exec, s[{MK[i]}:{MK[i] + 1}]")
            o(f"    v_cmp_gt_u32 vcc, s42, v{RB[i] + 3}")
            o("    s_and_b64 exec, exec, vcc")
            o(f"    v_and_b32 v11, 0xfc, v{RB[i] + 2}")
            place(RB[i], RB[i] + 2, RB[i] + 3, 11, 10)
        o("    s_mov_b64 exec, -1")
    xreads(0)
    if FRE:
        if "tfirst" in FLAGS:
            o("    s_waitcnt vmcnt(3) lgkmcnt(0)")
            xs("fr")
            tile(0)
            o("    s_waitcnt lgkmcnt(4)")
            tile(1)
            xs("t1")
            if "rec" in XS:
                o("    s_waitcnt vmcnt(0)")
            xs("rec")
            ranks(0)
            o(f"    s_waitcnt lgkmcnt({4 + NRC})")
            tile(2)
            o("    s_waitcnt lgkmcnt(1)")
            xs("atom")
            places(False)
        else:
            o("    s_waitcnt vmcnt(3) lgkmcnt(0)")
            tile(0)
            ranks(0)
            o(f"    s_waitcnt lgkmcnt({4 + NRC})")
            tile(1)
            o("    s_waitcnt lgkmcnt(8)")
            places(False)
            o("    s_waitcnt lgkmcnt(14)")
            tile(2)
        xs("placed")
    else:
        ranks(4)
        places(True)
        xs("placed")
        o("    s_waitcnt vmcnt(0)")
        tile(0)
        o("    s_waitcnt lgkmcnt(4)")
        tile(1)
        o("    s_waitcnt lgkmcnt(4)")
        tile(2)
    o(f"    v_add_u32 v11, {4 * NRC}, v2")
    o(f"    v_add_u32 v7, {48 * NRC}, v7")
    o("K2_rem:")
    o("    v_cmp_gt_u32 vcc, v5, v11")
    o("    s_and_b64 exec, exec, vcc")
    o("    s_cbranch_execz K2_rem_end")
    o("    buffer_load_dwordx3 v[48:50], v7, s[16:19], 0 offen")
    o("    s_waitcnt vmcnt(0)")
    o("    v_and_b32 v10, 0xfc, v50")
    o(f"    ds_add_rtn_u32 v51, v10, v69 offset:{L_CNT}")
    o("    s_waitcnt lgkmcnt(0)")
    o("    s_mov_b64 s[44:45], exec")
    o("    v_cmp_gt_u32 vcc, s42, v51")
    o("    s_and_b64 exec, exec, vcc")
    place(48, 50, 51, 10, 12)
    o("    s_mov_b64 exec, s[44:45]")
    o("    v_add_u32 v11, 4, v11")
    o("    v_add_u32 v7, 48, v7")
    o("    s_branch K2_rem")
    o("K2_rem_end:")
    o("    s_mov_b64 exec, -1")
    o("    s_mov_b32 s75, s78")
    o("    s_mov_b32 s77, s79")
    o("    v_lshlrev_b32 v8, 2, v1")
    o(f"    s_mov_b64 s[{S_FIFO}:{S_FIFO+1}], 0")
    o(f"    s_mov_b32 s{S_FSH}, 0")
    o(f"    v_mov_b32 v{V_OADDR}, v{V_OB}")
    o(f"    v_mov_b32 v{V_EADDR}, v{V_EB}")
    o(f"    v_mov_b32 v{V_LOFFN}, v{V_LOFF}")
    o("    s_waitcnt lgkmcnt(0)")
    o("    s_barrier")
    xs("bar2")
    if "noprio" not in FLAGS and PR[0][1] != 3:
        o(f"    s_setprio {PR[0][1]}")
    o(f"    ds_read_b32 v{V_CNT}, v8 offset:{L_CNT}")
    o("    v_lshlrev_b32 v8, 1, v8")
    o(f"    ds_read_b64 v[{V_WC}:{V_WC + 1}], v8 offset:{L_WC}")
    ticket()
    for r in range(8):
        o(f"    v_mov_b32 v{V_E + r}, 0")
    o("    s_waitcnt lgkmcnt(0)")
    if "k2pro" in FLAGS:
        o("    s_branch K2_done")
    lswitch()
    o(f"    ds_read_b32 v{V_OFFN}, v{V_OADDR}")
    peek_an()
    for j in range(R):
        lissue(j)
    cpop("K2_slowscan")
    unpack_a()
    if "bench" in FLAGS:
        o(f"    s_movk_i32 s{S_CREM}, 2000")
        o(f"    s_mov_b32 s{S_LREM}, 0x7fffffff")
        o(f"    s_mov_b64 s[{S_FIFO}:{S_FIFO+1}], 63")
        o(f"    s_mov_b32 s{S_FSH}, 8")
    o(f"    s_waitcnt vmcnt({R - 1})")
    M1(0, 0)
    o("    s_nop 5")
    M2(0, 0)
    o("    s_nop 3")
    o(f"    s_sub_u32 s{S_CREM}, s{S_CREM}, 2")
    o("    s_cbranch_scc0 K2_step0")
    peek_an()
    o("    s_waitcnt lgkmcnt(0)")
    unpack_a()
    o("    s_nop 0")
    for j in range(R):
        jn = (j + 1) % R
        g, gn = j & 1, (j + 1) & 1
        o(f"K2_step{j}:")
        o(f"    s_waitcnt vmcnt({R - 2})")
        M1(jn, gn)
        Va(g)
        M2(jn, gn)
        Vb(j, g)
        lissue(j)
        o(f"    s_sub_u32 s{S_CREM}, s{S_CREM}, 1")
        o(f"    s_cmp_lt_i32 s{S_CREM}, 0")
        o(f"    s_cbranch_scc1 K2_rare{j}")
        if jn == 0:
            o("    s_branch K2_step0")
        def ool(j=j, jn=jn):
            o(f"K2_rare{j}:")
            o(f"    s_cmp_eq_i32 s{S_CREM}, -1")
            o(f"    s_cbranch_scc1 K2_pk{j}")
            o(f"    s_cmp_lg_u32 s{S_SKIP}, 0")
            o(f"    s_cbranch_scc1 K2_nf{j}")
            finalize()
            o(f"K2_nf{j}:")
            cpop("K2_slowscan")
            o(f"    s_sub_u32 s{S_CREM}, s{S_CREM}, 2")
            o(f"    s_cbranch_scc0 K2_step{jn}")
            o(f"K2_pk{j}:")
            peek_an()
            o("    s_waitcnt lgkmcnt(0)")
            unpack_a()
            o(f"    s_branch K2_step{jn}")
        OOL.append(ool)
    i = 0
    while i < len(OOL):
        OOL[i]()
        i += 1
    o("K2_slowscan:")
    o("    s_waitcnt vmcnt(0) lgkmcnt(0)")
    o(f"    v_cmp_lt_u32 vcc, s42, v{V_CNT}")
    o("    s_cmp_eq_u64 vcc, 0")
    o("    s_cbranch_scc1 K2_done")
    o("    s_mov_b64 s[78:79], vcc")
    o("K2_snode:")
    o("    s_cmp_eq_u64 s[78:79], 0")
    o("    s_cbranch_scc1 K2_done")
    o(f"    s_ff1_i32_b64 s{S_CNODE}, s[78:79]")
    o(f"    s_bitset0_b64 s[78:79], s{S_CNODE}")
    o(f"    s_and_b32 s65, s{S_CNODE}, 7")
    o("    s_cmp_lg_u32 s65, s48")
    o("    s_cbranch_scc1 K2_snode")
    read_an(S_CNODE)
    o("    s_waitcnt lgkmcnt(0)")
    unpack_a()
    zero_acc()
    o(f"    s_lshl_b32 s61, s{S_CNODE}, 2")
    o("    s_mov_b32 s68, 0")
    o("K2_sseg:")
    o(f"    s_cmp_ge_u32 s68, {W}")
    o("    s_cbranch_scc1 K2_sfin")
    o("    s_lshl_b32 s69, s68, 2")
    o("    s_add_u32 s69, s69, s49")
    o("    s_buffer_load_dword s70, s[12:15], s69")
    o("    s_waitcnt lgkmcnt(0)")
    o("    s_lshr_b32 s71, s70, 16")
    o("    s_and_b32 s70, s70, 0xffff")
    o(f"    s_mul_i32 s67, s68, {CHS}")
    o("    s_add_u32 s68, s68, 1")
    o("    s_mov_b32 s73, 0")
    o("K2_sgrp:")
    o("    s_cmp_ge_u32 s73, s70")
    o("    s_cbranch_scc1 K2_sseg")
    G = V_G
    o(f"    v_mbcnt_lo_u32_b32 v{G}, -1, 0")
    o(f"    v_mbcnt_hi_u32_b32 v{G}, -1, v{G}")
    o(f"    v_add_u32 v{G+1}, s73, v{G}")
    o("    s_add_u32 s74, s71, s73")
    o(f"    v_add_u32 v{G+2}, s74, v{G}")
    o(f"    v_mul_u32_u24 v{G+2}, 12, v{G+2}")
    o(f"    v_cmp_gt_u32 vcc, s70, v{G+1}")
    o("    s_add_u32 s73, s73, 64")
    o(f"    v_mov_b32 v{V_L+2}, 0x1fc")
    o("    s_mov_b64 exec, vcc")
    o(f"    buffer_load_dwordx3 v[{V_L}:{V_L+2}], v{G+2}, s[16:19], s67 offen")
    o("    s_mov_b64 exec, -1")
    o(f"    s_lshl_b32 s65, s{S_CNODE}, 8")
    o(f"    v_lshlrev_b32 v{G+1}, 2, v{G}")
    o(f"    v_add_u32 v{G+1}, s65, v{G+1}")
    o(f"    v_lshlrev_b32 v{G+2}, 1, v{G+1}")
    o(f"    v_mov_b32 v{G+3}, {hex(DUMMY_OFF)}")
    o(f"    v_mov_b32 v{G+4}, 0")
    o(f"    v_mov_b32 v{G+5}, 0")
    o(f"    ds_write_b32 v{G+1}, v{G+3} offset:{L_OFFS}")
    o(f"    ds_write_b64 v{G+2}, v[{G+4}:{G+5}] offset:{L_E}")
    o("    s_waitcnt vmcnt(0)")
    o(f"    v_and_b32 v{G+1}, 0x1fc, v{V_L+2}")
    o(f"    v_cmp_eq_u32 vcc, s61, v{G+1}")
    o("    s_bcnt1_i32_b64 s64, vcc")
    o("    s_cmp_eq_u32 s64, 0")
    o("    s_cbranch_scc1 K2_sgrp")
    o(f"    v_mbcnt_lo_u32_b32 v{V_L+3}, vcc_lo, 0")
    o(f"    v_mbcnt_hi_u32_b32 v{V_L+3}, vcc_hi, v{V_L+3}")
    o("    s_mov_b64 exec, vcc")
    place(V_L, V_L + 2, V_L + 3, G + 1, G + 2)
    o("    s_mov_b64 exec, -1")
    o("    s_add_u32 s64, s64, 3")
    o("    s_lshr_b32 s64, s64, 2")
    o("    s_waitcnt lgkmcnt(0)")
    process_simple("s", 64)
    o("    s_branch K2_sgrp")
    o("K2_sfin:")
    finalize()
    o("    s_branch K2_snode")
    o("K2_done:")
    o("    s_waitcnt lgkmcnt(0)")
    o("    s_barrier")
    o("    v_mbcnt_lo_u32_b32 v0, -1, 0")
    o("    v_mbcnt_hi_u32_b32 v0, -1, v0")
    o("    s_lshl_b32 s62, s48, 6")
    o("    v_add_u32 v0, s62, v0")
    o("    s_lshl_b32 s62, s51, 3")
    o("    v_cmp_gt_u32 vcc, s62, v0")
    o("    s_and_b64 exec, exec, vcc")
    o("    s_cbranch_execz K2_done1")
    o("    v_lshlrev_b32 v1, 4, v0")
    o(f"    ds_read_b128 v[4:7], v1 offset:{L_U}")
    o("    v_lshrrev_b32 v2, 3, v0")
    o("    v_and_b32 v3, 7, v0")
    o("    v_lshlrev_b32 v2, 8, v2")
    o("    v_lshl_add_u32 v2, v3, 4, v2")
    o("    s_lshl_b32 s62, s50, 8")
    o("    s_lshl_b32 s63, s46, 7")
    o("    s_add_u32 s62, s62, s63")
    o("    s_waitcnt lgkmcnt(0)")
    o("    buffer_store_dwordx4 v[4:7], v2, s[52:55], s62 offen")
    o("K2_done1:")
    o("    s_mov_b64 exec, -1")
    stamp_flush()
    o("K2_done0:")
    o("    s_endpgm")

def desc(name, vgpr, sgpr):
    o(f".amdhsa_kernel {name}")
    o(f"  .amdhsa_next_free_vgpr {vgpr}")
    o(f"  .amdhsa_next_free_sgpr {sgpr}")
    o(f"  .amdhsa_accum_offset {(vgpr + 3) // 4 * 4}")
    o("  .amdhsa_group_segment_fixed_size 0")
    o("  .amdhsa_kernarg_size 96")
    o("  .amdhsa_user_sgpr_count 2")
    o("  .amdhsa_user_sgpr_kernarg_segment_ptr 1")
    o("  .amdhsa_system_sgpr_workgroup_id_x 1")
    o(".end_amdhsa_kernel")

hdr()
k1()
k2_full()
o('.section .rodata,"a"')
o(".p2align 6")
desc("gk1_kernel", 256 if TL1 else 240, 102)
o(".p2align 6")
desc("gk2_kernel", K2_VGPR, 102 if TL else 80)
path = sys.argv[1] if len(sys.argv) > 1 else f"cdna_kernels/{NAME}.s"
open(path, "w").write("\n".join(out) + "\n")
print("wrote", path, "lines", len(out), "K2 LDS", K2_LDS)
```

```python
import sys, os
FLAGS = os.environ.get("GF", "").split(",") + ["tfirst", "k1b", "xmap"]

NAME = "gather_scatter__edge_featured_mpnn_gatedgcn__graph"
N = 12500
E = 400000
W = 128
CH = 3125
NPB = 33
NB = 379
CAP = 64
TPW = 2
NTILES = 782
NGW = (NTILES + 8 * TPW - 1) // (8 * TPW)
K1_GRID = W + 2 + 2 * NGW if "xmap" not in FLAGS else W + 16 * ((NGW + 1 + 7) // 8)
DUMMY_ROW = 12512
DUMMY_OFF = (DUMMY_ROW + 1) * 512
OFF_BH = 0
OFF_FR = 0x700000
OFF_T = 0x800000
OFF_REC = 0x900000
CHS = 37504
K1_LDS = 42240
L_R = 4096
SC = " sc1" if "sc" in FLAGS else ""
NLOG2E = 0xBFB8AA3B

out = []
def o(s=""):
    out.append(s)

SN = 65
L_CNT = 0
L_TICKET = 256
L_ZERO = 272
L_OFFS = 512
OFFS_B = (NPB * SN * 2 + 8 + 15) // 16 * 16
L_E = L_OFFS + OFFS_B
E_B = (NPB * SN * 8 + 32 + 15) // 16 * 16
L_A = L_E + E_B
L_UX = L_A + NPB * 256
XSTR = 272
L_X = L_UX + NPB * 256
L_SCR = L_X
L_WC = L_X + NPB * XSTR
K2_LDS = L_WC + 512
assert L_E % 16 == 0 and L_SCR % 16 == 0 and NPB * XSTR >= 8192 and K2_LDS <= 54608
DUMMY_PAT = DUMMY_ROW | (DUMMY_ROW << 16)
EPS4 = 0x348637bd

def hdr():
    o("; Kernarg layout for this problem (96 bytes, ptrs only, base s[0:1]):")
    o(f"; @launch kernel=gk1_kernel grid=({K1_GRID},1,1) block=(512,1,1) lds={K1_LDS}")
    o(f"; @launch kernel=gk2_kernel grid=({2 * NB},1,1) block=(512,1,1) lds={K2_LDS}")
    o('.amdgcn_target "amdgcn-amd-amdhsa--gfx950"')
    o(".text")

def srd(d, lo, hi, nbytes, add=0):
    if add:
        o(f"    s_add_u32 s{d}, s{lo}, {hex(add)}")
        o(f"    s_addc_u32 s{d+1}, s{hi}, 0")
    else:
        o(f"    s_mov_b32 s{d}, s{lo}")
        o(f"    s_mov_b32 s{d+1}, s{hi}")
    o(f"    s_mov_b32 s{d+2}, {hex(nbytes)}")
    o(f"    s_mov_b32 s{d+3}, 0x00020000")

TL1 = "tl1" in FLAGS
def st1(i):
    if not TL1: return
    o("    s_waitcnt lgkmcnt(0)")
    o(f"    s_memrealtime s[{80+2*i}:{81+2*i}]")
    o("    s_waitcnt lgkmcnt(0)")
def st1_flush():
    if not TL1: return
    o("    s_mov_b64 exec, -1")
    o("    s_waitcnt vmcnt(0) lgkmcnt(0)")
    o("    s_memrealtime s[100:101]")
    o("    s_waitcnt lgkmcnt(0)")
    srd(96, 26, 27, 0x100000, 0x4100000)
    for i in range(5):
        o(f"    v_mov_b32 v{240+i}, s{80+2*i}")
    o("    v_mov_b32 v245, s100")
    o("    v_mov_b32 v246, 0")
    o("    v_mov_b32 v247, 0")
    o("    v_lshrrev_b32 v248, 6, v0")
    o("    v_lshlrev_b32 v248, 6, v248")
    o("    s_mov_b64 exec, 1")
    o("    buffer_store_dwordx4 v[240:243], v248, s[96:99], s95 offen")
    o("    buffer_store_dwordx4 v[244:247], v248, s[96:99], s95 offen offset:16")
    o("    s_mov_b64 exec, -1")

def k1():
    o(".globl gk1_kernel")
    o(".p2align 8")
    o(".type gk1_kernel,@function")
    o("gk1_kernel:")
    o(f"    s_cmp_ge_u32 s2, {K1_GRID}")
    o("    s_cbranch_scc1 K1_done0")
    st1(0)
    o("    s_lshl_b32 s95, s2, 9")
    o("    s_load_dwordx16 s[4:19], s[0:1], 0")
    o("    s_load_dwordx8 s[20:27], s[0:1], 64")
    o(f"    s_cmp_ge_u32 s2, {W}")
    o("    s_cbranch_scc1 K1_gemm" if "nogemm" not in FLAGS else "    s_cbranch_scc1 K1_done")
    if "nopart" in FLAGS:
        o("    s_branch K1_done")
    NI = 7
    o("    v_lshlrev_b32 v1, 3, v0")
    o("    v_lshlrev_b32 v2, 2, v0")
    o("    v_mov_b32 v4, 0")
    o("    ds_write_b32 v2, v4")
    o(f"    s_mul_i32 s3, s2, {CH * 4}")
    o("    s_lshl_b32 s28, s3, 1")
    o("    s_waitcnt lgkmcnt(0)")
    o("    s_add_u32 s32, s10, s3")
    o("    s_addc_u32 s33, s11, 0")
    o(f"    s_mov_b32 s34, {CH * 4}")
    o("    s_mov_b32 s35, 0x00020000")
    o("    s_add_u32 s36, s8, s3")
    o("    s_addc_u32 s37, s9, 0")
    o(f"    s_mov_b32 s38, {CH * 4}")
    o("    s_mov_b32 s39, 0x00020000")
    o("    s_add_u32 s40, s6, s28")
    o("    s_addc_u32 s41, s7, 0")
    o(f"    s_mov_b32 s42, {CH * 8}")
    o("    s_mov_b32 s43, 0x00020000")
    o(f"    s_mul_i32 s29, s2, {CHS}")
    o(f"    s_add_u32 s29, s29, {hex(OFF_REC)}")
    o("    s_add_u32 s44, s26, s29")
    o("    s_addc_u32 s45, s27, 0")
    o(f"    s_mov_b32 s46, {CHS}")
    o("    s_mov_b32 s47, 0x00020000")
    srd(48, 26, 27, NB * W * 4, OFF_T)
    R = lambda i: 16 + 4 * i
    for i in range(NI):
        o(f"    s_movk_i32 s{56 + i}, {i * 2048}")
    for i in range(NI):
        o(f"    s_movk_i32 s{72 + i}, {i * 4096}")
    for i in range(NI):
        o(f"    buffer_load_dword v{80 + i}, v2, s[32:35], s{56 + i} offen")
    if "k1b" in FLAGS:
        o("    s_barrier")
    for i in range(NI):
        o(f"    buffer_load_dword v{96 + i}, v2, s[36:39], s{56 + i} offen")
    for i in range(NI):
        o(f"    buffer_load_dwordx2 v[{R(i)}:{R(i) + 1}], v1, s[40:43], s{72 + i} offen")
    o("    v_mov_b32 v6, 1")
    o(f"    v_cmp_gt_u32 s[30:31], {CH - 6 * 512}, v0")
    o("    s_movk_i32 s90, 1986")
    o("    s_movk_i32 s91, 33")
    o("    v_lshrrev_b32 v12, 6, v0")
    if "k1b" not in FLAGS:
        o("    s_barrier")
    else:
        o("    s_nop 0")
    o("    v_readfirstlane_b32 s92, v12")
    for i in range(NI):
        d, s_, b = 80 + i, 96 + i, R(i) + 3
        o(f"    s_waitcnt vmcnt({2 * NI - 1 - i + NI})")
        o(f"    v_mul_u32_u24 v{b}, s90, v{d}")
        o(f"    v_lshrrev_b32 v{b}, 16, v{b}")
        o(f"    v_mul_u32_u24 v7, s91, v{b}")
        o(f"    v_sub_u32 v{d}, v{d}, v7")
        o(f"    v_lshlrev_b32 v{b}, 2, v{b}")
        if i == NI - 1:
            o("    s_mov_b64 exec, s[30:31]")
        o(f"    ds_add_rtn_u32 v{112 + i}, v{b}, v6")
        if i == NI - 1:
            o("    s_mov_b64 exec, -1")
    st1(1)
    if "k1b" in FLAGS:
        for i in range(NI):
            o(f"    v_lshlrev_b32 v{R(i) + 2}, 18, v{80 + i}")
    else:
        o(f"    s_waitcnt vmcnt({NI})")
        for i in range(NI):
            o(f"    v_lshlrev_b32 v{80 + i}, 2, v{80 + i}")
            o(f"    v_lshl_or_b32 v{R(i) + 2}, v{96 + i}, 9, v{80 + i}")
    o("    s_waitcnt lgkmcnt(0)")
    o("    s_barrier")
    st1(2)
    o("    ds_read_b32 v8, v2")
    o("    s_waitcnt lgkmcnt(0)")
    o("    v_mov_b32 v11, v8")
    o("    s_nop 1")
    for sh in (1, 2, 4, 8):
        o(f"    v_add_u32_dpp v11, v11, v11 row_shr:{sh} row_mask:0xf bank_mask:0xf bound_ctrl:0")
        o("    s_nop 1")
    o("    v_add_u32_dpp v11, v11, v11 row_bcast:15 row_mask:0xa bank_mask:0xf")
    o("    s_nop 1")
    o("    v_add_u32_dpp v11, v11, v11 row_bcast:31 row_mask:0xc bank_mask:0xf")
    o("    s_nop 1")
    o("    v_readlane_b32 s93, v11, 63")
    o("    s_lshl_b32 s94, s92, 2")
    o("    s_add_u32 s94, s94, 2048")
    o("    v_mov_b32 v13, s94")
    o("    v_mov_b32 v14, s93")
    o("    s_mov_b64 exec, 1")
    o("    ds_write_b32 v13, v14")
    o("    s_mov_b64 exec, -1")
    o("    s_waitcnt lgkmcnt(0)")
    o("    s_barrier")
    o("    v_and_b32 v13, 7, v0")
    o("    v_lshlrev_b32 v14, 2, v13")
    o("    ds_read_b32 v4, v14 offset:2048")
    o("    v_sub_u32 v11, v11, v8")
    o("    v_cmp_gt_u32 vcc, s92, v13")
    o("    s_waitcnt lgkmcnt(0)")
    o("    v_cndmask_b32 v4, 0, v4, vcc")
    o("    s_nop 1")
    for sh in (1, 2, 4):
        o(f"    v_add_u32_dpp v4, v4, v4 row_shr:{sh} row_mask:0xf bank_mask:0xf bound_ctrl:0")
        o("    s_nop 1")
    o("    v_readlane_b32 s93, v4, 7")
    o("    s_nop 1")
    o("    v_add_u32 v4, s93, v11")
    o("    ds_write_b32 v2, v4")
    o("    v_lshl_or_b32 v6, v4, 16, v8")
    o("    v_lshlrev_b32 v12, 9, v0")
    o("    s_lshl_b32 s94, s2, 2")
    o("    buffer_store_dword v6, v12, s[48:51], s94 offen")
    o("    s_waitcnt lgkmcnt(0)")
    o("    s_barrier")
    st1(3)
    for i in range(NI):
        o(f"    ds_read_b32 v{80 + i}, v{R(i) + 3}")
    o(f"    v_mov_b32 v5, {L_R}")
    o("    s_waitcnt vmcnt(1)")
    if "k1b" in FLAGS:
        for i in range(NI):
            o(f"    v_or_b32 v{R(i) + 2}, v{96 + i}, v{R(i) + 2}")
    for i in range(NI):
        o(f"    s_waitcnt lgkmcnt({NI - 1 - i + 2 * i})")
        o(f"    v_add_u32 v{80 + i}, v{80 + i}, v{112 + i}")
        o(f"    v_mad_u32_u24 v{80 + i}, v{80 + i}, 12, v5")
        if i == NI - 1:
            o("    s_mov_b64 exec, s[30:31]")
        o(f"    ds_write2_b32 v{80 + i}, v{R(i)}, v{R(i) + 1} offset0:{L_R // 4 % 256 if False else 0} offset1:1")
        o(f"    ds_write_b32 v{80 + i}, v{R(i) + 2} offset:8")
    o("    s_mov_b64 exec, -1")
    o("    v_lshlrev_b32 v3, 4, v0")
    o("    s_waitcnt lgkmcnt(0)")
    o("    s_barrier")
    for i in range(5):
        o(f"    ds_read_b128 v[{16 + 4 * i}:{19 + 4 * i}], v3 offset:{L_R + 8192 * i}")
    for i in range(5):
        o(f"    s_movk_i32 s{56 + i}, {8192 * i}" if 8192 * i < 32768 else f"    s_mov_b32 s{56 + i}, {8192 * i}")
    for i in range(5):
        o(f"    s_waitcnt lgkmcnt({4 - i})")
        o(f"    buffer_store_dwordx4 v[{16 + 4 * i}:{19 + 4 * i}], v3, s[44:47], s{56 + i} offen{SC}")
    st1(4)
    st1_flush()
    o("    s_endpgm")
    o("K1_gemm:")
    o(f"    s_sub_u32 s2, s2, {W}")
    if "xmap" in FLAGS:
        o("    s_lshr_b32 s28, s2, 4")
        o("    s_lshl_b32 s28, s28, 3")
        o("    s_and_b32 s29, s2, 7")
        o("    s_add_u32 s28, s28, s29")
        o(f"    s_cmp_ge_u32 s28, {NGW + 1}")
        o("    s_cbranch_scc1 K1_done0")
        o("    s_bfe_u32 s29, s2, 0x10003")
        o("    s_lshl_b32 s2, s28, 1")
        o("    s_add_u32 s2, s2, s29")
    o("    v_lshrrev_b32 v1, 6, v0")
    o("    v_and_b32 v2, 15, v0")
    o("    v_bfe_u32 v3, v0, 4, 2")
    o("    v_readfirstlane_b32 s3, v1")
    o("    v_and_b32 v8, 63, v0")
    o("    v_lshlrev_b32 v8, 4, v8")
    o("    s_and_b32 s28, s2, 1")
    if "swp" in FLAGS:
        o("    s_bfe_u32 s29, s2, 0x10003")
        o("    s_lshl_b32 s29, s29, 2")
        o("    s_xor_b32 s3, s3, s29")
    o("    s_lshr_b32 s29, s3, 2")
    o("    s_and_b32 s30, s3, 3")
    o("    s_waitcnt lgkmcnt(0)")
    o("    s_cmp_lt_u32 s2, 2")
    o("    s_cselect_b32 s32, s12, s14")
    o("    s_cselect_b32 s33, s13, s15")
    o("    s_cselect_b32 s36, s18, s20")
    o("    s_cselect_b32 s37, s19, s21")
    o("    s_cmp_eq_u32 s29, 0")
    o("    s_cselect_b32 s32, s32, s36")
    o("    s_cselect_b32 s33, s33, s37")
    o("    s_mov_b32 s34, 32768")
    o("    s_mov_b32 s35, 0x00020000")
    srd(40, 4, 5, N * 256)
    srd(44, 26, 27, (DUMMY_ROW + 2) * 512, OFF_BH)
    srd(48, 26, 27, 65536 + 1024, OFF_FR)
    o("    s_lshl_b32 s31, s28, 7")
    o("    v_lshlrev_b32 v4, 11, v3")
    o("    v_lshl_add_u32 v4, v2, 3, v4")
    o("    v_add_u32 v4, s31, v4")
    o("    s_lshl_b32 s31, s30, 13")
    WT = 208
    for i in range(8):
        o(f"    buffer_load_dwordx2 v[{WT + 2 * i}:{WT + 2 * i + 1}], v4, s[32:35], s31 offen offset:{256 * i}")
    o("    v_lshlrev_b32 v5, 8, v2")
    o("    v_lshl_add_u32 v5, v3, 4, v5")
    o("    s_sub_u32 s52, s2, 2")
    o("    s_lshr_b32 s52, s52, 1")
    o(f"    s_mul_i32 s52, s52, {8 * TPW}")
    o(f"    s_mul_i32 s53, s3, {TPW}")
    o("    s_add_u32 s52, s52, s53")
    o("    s_lshl_b32 s53, s52, 12")
    XB = [144, 160]
    ACC = 176
    o("    s_cmp_lt_u32 s2, 2")
    o("    s_cbranch_scc1 K1_nox")
    if "k1b" in FLAGS:
        o("    s_barrier")
    XE = 1 if "k1b" in FLAGS else TPW
    def xld(t):
        o(f"    s_add_u32 s55, s53, {4096 * t}")
        for s in range(4):
            o(f"    buffer_load_dwordx4 v[{XB[t] + 4 * s}:{XB[t] + 4 * s + 3}], v5, s[40:43], s55 offen offset:{64 * s}")
    for t in range(XE):
        xld(t)
    o("K1_nox:")
    o("    s_mov_b32 s60, 0x05040100")
    o("    s_mov_b32 s61, 0x07060302")
    o(f"    s_mov_b32 s62, {hex(NLOG2E)}")
    o("    s_mov_b32 s64, 0xffff0000")
    o("    s_brev_b32 s65, 1")
    o("    s_lshl_b32 s31, s28, 8")
    o("    v_lshlrev_b32 v6, 11, v3")
    o("    v_lshl_add_u32 v6, v2, 4, v6")
    o("    v_add_u32 v6, s31, v6")
    o("    s_cmp_lt_u32 s2, 2")
    o("    s_cbranch_scc1 K1_w0")
    o(f"    s_waitcnt vmcnt({4 * XE})")
    o("    s_branch K1_w1")
    o("K1_w0:")
    o("    s_waitcnt vmcnt(0)")
    o("K1_w1:")
    st1(1)
    FD = 224
    for kp in range(4):
        a0, a1 = WT + 4 * kp, WT + 4 * kp + 1
        b0, b1 = WT + 4 * kp + 2, WT + 4 * kp + 3
        o(f"    v_perm_b32 v{FD + 0 + kp}, v{b0}, v{a0}, s60")
        o(f"    v_perm_b32 v{FD + 4 + kp}, v{b0}, v{a0}, s61")
        o(f"    v_perm_b32 v{FD + 8 + kp}, v{b1}, v{a1}, s60")
        o(f"    v_perm_b32 v{FD + 12 + kp}, v{b1}, v{a1}, s61")
    o("    s_cmp_lt_u32 s2, 2")
    o("    s_cbranch_scc0 K1_g2")
    o("    s_lshl_b32 s54, s29, 1")
    o("    s_add_u32 s54, s54, s28")
    o("    s_lshl_b32 s54, s54, 14")
    o("    s_lshl_b32 s55, s30, 10")
    o("    s_add_u32 s54, s54, s55")
    for u in range(4):
        o(f"    s_add_u32 s55, s54, {4096 * u}")
        o(f"    buffer_store_dwordx4 v[{FD + 4 * u}:{FD + 4 * u + 3}], v8, s[48:51], s55 offen")
    o("    s_cmp_lg_u32 s3, 1")
    o("    s_cbranch_scc1 K1_nwc")
    srd(52, 16, 17, 1024)
    o("    s_lshl_b32 s31, s28, 7")
    o("    v_lshlrev_b32 v9, 3, v2")
    o("    v_lshl_add_u32 v9, v3, 1, v9")
    o("    v_add_u32 v9, s31, v9")
    for k in range(4):
        o(f"    buffer_load_ushort v{16 + k}, v9, s[52:55], 0 offen offset:{256 * k}")
    o("    s_lshl_b32 s31, s28, 9")
    o("    s_add_u32 s31, s31, 65536")
    o("    v_lshrrev_b32 v9, 1, v8")
    o("    s_waitcnt vmcnt(0)")
    for k in range(4):
        o(f"    v_lshlrev_b32 v{16 + k}, 16, v{16 + k}")
        o(f"    v_mul_f32 v{16 + k}, s62, v{16 + k}")
    o("    v_cvt_pk_bf16_f32 v20, v16, v17")
    o("    v_cvt_pk_bf16_f32 v21, v18, v19")
    o("    buffer_store_dwordx2 v[20:21], v9, s[48:51], s31 offen")
    o("    s_endpgm")
    o("K1_nwc:")
    o("    s_cmp_lg_u32 s2, 0")
    o("    s_cbranch_scc1 K1_done")
    o("    v_cmp_gt_u32 vcc, 64, v0")
    o("    s_and_saveexec_b64 s[30:31], vcc")
    o("    s_cbranch_execz K1_done")
    o("    v_lshlrev_b32 v3, 4, v0")
    o(f"    v_add_u32 v3, {DUMMY_ROW * 512}, v3")
    o("    v_mov_b32 v8, 0x4f00")
    o("    v_mov_b32 v9, 0x4f00")
    o("    v_mov_b32 v10, 0x4f00")
    o("    v_mov_b32 v11, 0x4f00")
    o("    buffer_store_dwordx4 v[8:11], v3, s[44:47], 0 offen")
    o("    s_endpgm")
    o("K1_g2:")
    o("    s_lshl_b32 s54, s3, 12")
    o("    v_add_u32 v9, s54, v8")
    for u in range(4):
        o(f"    ds_write_b128 v9, v[{FD + 4 * u}:{FD + 4 * u + 3}] offset:{1024 * u}")
    o("    s_waitcnt lgkmcnt(0)")
    o("    s_barrier")
    st1(2)
    for g in range(8):
        for u in range(4):
            r = 16 + 16 * g + 4 * u
            o(f"    ds_read_b128 v[{r}:{r + 3}], v8 offset:{4096 * g + 1024 * u}")
    for t in range(XE, TPW):
        xld(t)
    TMP = [208, 224]
    for t in range(TPW):
        xb = XB[t]
        o(f"    s_add_u32 s54, s52, {t}")
        o(f"    s_cmp_ge_u32 s54, {NTILES}")
        o("    s_cbranch_scc1 K1_done")
        o(f"    s_waitcnt vmcnt({4 * (TPW - 1 - t) + 4 * t})")
        for s in range(4):
            for m in range(2):
                if t == 0:
                    g = 4 * m + s
                    o(f"    s_waitcnt lgkmcnt({min(15, 32 - 4 * (g + 1))})")
                for u in range(4):
                    a = ACC + 16 * m + 4 * u
                    f = 16 + 16 * (4 * m + s) + 4 * u
                    c = "0" if s == 0 else f"v[{a}:{a + 3}]"
                    o(f"    v_mfma_f32_16x16x32_bf16 v[{a}:{a + 3}], v[{xb + 4 * s}:{xb + 4 * s + 3}], v[{f}:{f + 3}], {c}")
        o("    s_lshl_b32 s63, s54, 13")
        st1(3 + t)
        o("    s_nop 7")
        for j in range(4):
            tb = TMP[t] + 4 * j
            for u in range(4):
                o(f"    v_mul_f32 v{ACC + 4 * u + j}, s62, v{ACC + 4 * u + j}")
            o(f"    v_cvt_pk_bf16_f32 v10, v{ACC + j}, v{ACC + 4 + j}")
            o(f"    v_cvt_pk_bf16_f32 v12, v{ACC + 8 + j}, v{ACC + 12 + j}")
            o("    v_lshrrev_b32 v11, 16, v10")
            o("    v_and_b32 v10, 0xffff, v10")
            o("    v_lshrrev_b32 v13, 16, v12")
            o("    v_and_b32 v12, 0xffff, v12")
            for u in range(4):
                h = ACC + 16 + 4 * u + j
                b = 10 + u
                o(f"    v_and_b32 v14, 0x7fffffff, v{h}")
                o("    v_add_u32 v14, 0x8000, v14")
                o(f"    v_sub_u32 v14, v14, v{b} clamp")
                o(f"    v_and_or_b32 v14, v14, s64, v{b}")
                o(f"    v_and_or_b32 v{tb + u}, v{h}, s65, v14")
            o(f"    buffer_store_dwordx4 v[{tb}:{tb + 3}], v6, s[44:47], s63 offen offset:{512 * j}")
    o("K1_done:")
    st1_flush()
    o("K1_done0:")
    o("    s_endpgm")

R = 4
V_L = 0
V_E = 16
V_G = 24
V_WC = 32
V_XU = 34
V_A = 36
V_NUM = 40
V_DEN = 44
V_OADDR = 48
V_EADDR = 49
V_CNT = 50
V_TK = 51
V_IDX = 52
V_LOFF = 53
V_T0 = 54
V_Q = 58
V_ZERO = 69
V_S = 70
V_LOFF0 = 74
V_FOFF = 75
V_OB = 76
V_EB = 77
V_SCRW = 78
V_SCRR = 79
K2_VGPR = 80
S_ONE = 56
S_CNODE = 60
S_CREM = 64
S_LREM = 67
S_FIFO = 68
S_FSH = 70
S_SKIP = 76
S_2SN = 43

def M1(s, g):
    if "nomfma" in FLAGS: return
    L = V_L + 4 * s
    G = V_G + 4 * g
    o(f"    v_mfma_f32_16x16x32_bf16 v[{G}:{G+3}], v[{V_S}:{V_S+3}], v[{L}:{L+3}], v[{V_A}:{V_A+3}]")

def M2(s, g):
    if "nomfma" in FLAGS: return
    Ee = V_E + 2 * s
    G = V_G + 4 * g
    o(f"    v_mfma_f32_16x16x16_bf16 v[{G}:{G+3}], v[{Ee}:{Ee+1}], v[{V_WC}:{V_WC+1}], v[{G}:{G+3}]")

def Va(g):
    if "novalu" in FLAGS:
        o("    s_nop 5"); return
    G = V_G + 4 * g
    for t in range(4):
        o(f"    v_exp_f32 v{G+t}, v{G+t}")
    for t in (0, 2):
        o(f"    v_pk_add_f32 v[{G+t}:{G+t+1}], v[{G+t}:{G+t+1}], s[{S_ONE}:{S_ONE+1}]")

def Vb(s, g):
    if "novalu" in FLAGS:
        o("    s_nop 7"); return
    L = V_L + 4 * s
    G = V_G + 4 * g
    for t in range(4):
        o(f"    v_rcp_f32 v{G+t}, v{G+t}")
    for t in (0, 2):
        o(f"    v_pk_fma_f32 v[{V_NUM+t}:{V_NUM+t+1}], v[{G+t}:{G+t+1}], v[{L+t}:{L+t+1}], v[{V_NUM+t}:{V_NUM+t+1}]")
    for t in (0, 2):
        o(f"    v_pk_add_f32 v[{V_DEN+t}:{V_DEN+t+1}], v[{V_DEN+t}:{V_DEN+t+1}], v[{G+t}:{G+t+1}]")

def ticket():
    o(f"    ds_append v{V_TK} offset:{L_TICKET}")

LS_ID = 0
OOL = []
def lswitch(jn):
    global LS_ID
    LS_ID += 1
    o(f"    v_readfirstlane_b32 s71, v{V_TK}")
    o("    s_mov_b32 s73, 0")
    o("    s_lshr_b32 s71, s71, 6")
    if "rep" in FLAGS:
        o("    s_mul_i32 s72, s71, 1986")
        o("    s_lshr_b32 s72, s72, 16")
        o("    s_mul_i32 s72, s72, 33")
        o("    s_sub_u32 s72, s71, s72")
        o(f"    s_cmp_ge_u32 s71, {33 * 41}")
        o("    s_cselect_b32 s71, 63, s72")
    o("    s_min_u32 s71, s71, 63")
    o("    s_nop 0")
    o(f"    v_readlane_b32 s72, v{V_CNT}, s71")
    o(f"    s_mul_i32 s74, s71, {2 * SN}")
    if jn:
        o(f"    s_sub_u32 s74, s74, {2 * jn}")
    o(f"    s_bfe_u32 s{S_LREM}, s72, 0x50006")
    o(f"    s_lshl_b64 s[72:73], s[72:73], s{S_FSH}")
    o(f"    s_or_b64 s[{S_FIFO}:{S_FIFO+1}], s[{S_FIFO}:{S_FIFO+1}], s[72:73]")
    o(f"    s_add_u32 s{S_FSH}, s{S_FSH}, 12")
    o("    s_cmp_ge_u32 s71, s51")
    o(f"    s_cbranch_scc1 K2_lend{LS_ID}")
    o(f"    s_sub_u32 s{S_LREM}, s{S_LREM}, 1")
    o(f"    v_add_u32 v{V_OADDR}, s74, v{V_OB}")
    o("    s_lshl_b32 s74, s74, 2")
    o(f"    v_add_u32 v{V_EADDR}, s74, v{V_EB}")
    ticket()
    o(f"    s_branch K2_lok{LS_ID}")
    o(f"K2_lend{LS_ID}:")
    o(f"    s_mov_b32 s{S_LREM}, 0x7fffffff")
    o(f"K2_lok{LS_ID}:")

LI_ID = 0
def lissue(j):
    global LI_ID
    LI_ID += 1
    lid = LI_ID
    jn = (j + 1) % R
    o("    s_waitcnt lgkmcnt(0)")
    o("    s_mov_b64 exec, s[40:41]")
    o(f"    ds_read_b64 v[{V_E+2*j}:{V_E+2*j+1}], v{V_EADDR} offset:{8*j}")
    o("    s_mov_b64 exec, -1")
    if "noload" not in FLAGS:
        o(f"    buffer_load_dwordx4 v[{V_L+4*j}:{V_L+4*j+3}], v[{V_IDX}:{V_IDX+1}], s[24:27], 0 idxen offen")
    o(f"    s_sub_u32 s{S_LREM}, s{S_LREM}, 1")
    o(f"    s_cbranch_scc1 K2_lsw{lid}")
    if jn == 0:
        if "bench" in FLAGS:
            o(f"    v_add_u32 v{V_T0}, {2*R}, v{V_OADDR}")
            o(f"    v_add_u32 v{V_T0+1}, {8*R}, v{V_EADDR}")
        else:
            o(f"    v_add_u32 v{V_OADDR}, {2*R}, v{V_OADDR}")
            o(f"    v_add_u32 v{V_EADDR}, {8*R}, v{V_EADDR}")
    o(f"K2_lret{lid}:")
    o(f"    ds_read_u16 v{V_IDX}, v{V_OADDR} offset:{2*jn}")
    def ool():
        o(f"K2_lsw{lid}:")
        lswitch(jn)
        o(f"    s_branch K2_lret{lid}")
    OOL.append(ool)

def place(e0, w, rank, t0, t1):
    o(f"    v_mul_u32_u24 v{t1}, 130, v{rank}")
    o(f"    v_and_b32 v{t1}, 0x1f8, v{t1}")
    o(f"    v_mad_u32_u24 v{t1}, v{t0}, s{S_2SN}, v{t1}")
    o(f"    v_lshrrev_b32 v{t0}, 2, v{t1}")
    o(f"    ds_write_b64 v{t1}, v[{e0}:{e0+1}] offset:{L_E}")
    o(f"    ds_write_b16 v{t0}, v{w} offset:{L_OFFS}")

def read_a(sreg):
    o(f"    s_lshl_b32 s65, s{sreg}, 8")
    o("    s_add_u32 s65, s65, s75")
    o(f"    v_add_u32 v{V_T0}, s65, v{V_LOFF0}")
    o(f"    ds_read_b128 v[{V_A}:{V_A+3}], v{V_T0}")

NS_ID = 0
PR = [tuple(int(x) for x in t.split(":")) for t in os.environ.get("PR", "0:3,16:2,24:1,29:0").split(",")]
def prio():
    global NS_ID
    NS_ID += 1
    if "noprio" in FLAGS: return
    for th, p in PR[1:]:
        o(f"    s_cmp_lt_u32 s{S_CNODE}, {th}")
        o(f"    s_cbranch_scc1 K2_pr{NS_ID}")
        o(f"    s_setprio {p}")
    o(f"K2_pr{NS_ID}:")

def zero_acc():
    o(f"    ds_read_b128 v[{V_NUM}:{V_NUM+3}], v{V_ZERO} offset:{L_ZERO}")
    o(f"    ds_read_b128 v[{V_DEN}:{V_DEN+3}], v{V_ZERO} offset:{L_ZERO+16}")

def cpop(endlabel):
    o(f"    s_and_b32 s{S_CNODE}, s{S_FIFO}, 0x3f")
    o(f"    s_bfe_u32 s{S_CREM}, s{S_FIFO}, 0x50006")
    o(f"    s_bfe_u32 s{S_SKIP}, s{S_FIFO}, 0x1000b")
    o(f"    s_lshr_b64 s[{S_FIFO}:{S_FIFO+1}], s[{S_FIFO}:{S_FIFO+1}], 12")
    o(f"    s_sub_u32 s{S_FSH}, s{S_FSH}, 12")
    o(f"    s_cmp_ge_u32 s{S_CNODE}, s51")
    o(f"    s_cbranch_scc1 {endlabel}")
    prio()

def peek_a():
    o(f"    s_and_b32 s71, s{S_FIFO}, 0x3f")
    o("    s_min_u32 s71, s71, 32")
    read_a(71)

def finalize(g):
    T = V_T0
    Nn, Dd = V_G + 4 * g, V_Q
    o(f"    s_lshl_b32 s65, s{S_CNODE}, 8")
    o(f"    ds_write_b128 v{V_SCRW}, v[{V_NUM}:{V_NUM+3}]")
    o(f"    ds_read2st64_b32 v[{Nn}:{Nn+1}], v{V_SCRR} offset0:0 offset1:1")
    o(f"    ds_read2st64_b32 v[{Nn+2}:{Nn+3}], v{V_SCRR} offset0:2 offset1:3")
    o(f"    ds_write_b128 v{V_SCRW}, v[{V_DEN}:{V_DEN+3}]")
    o(f"    ds_read2st64_b32 v[{Dd}:{Dd+1}], v{V_SCRR} offset0:0 offset1:1")
    o(f"    ds_read2st64_b32 v[{Dd+2}:{Dd+3}], v{V_SCRR} offset0:2 offset1:3")
    o(f"    v_add_u32 v{T}, s65, v{V_FOFF}")
    zero_acc()
    o(f"    ds_read_u16_d16_hi v{V_XU}, v{T} offset:{L_UX}")
    o(f"    ds_read_u16_d16_hi v{V_XU+1}, v{T} offset:{L_UX+128}")
    o("    s_waitcnt lgkmcnt(0)")
    o(f"    v_pk_add_f32 v[{Dd}:{Dd+1}], v[{Dd}:{Dd+1}], v[{Dd+2}:{Dd+3}]")
    o(f"    v_pk_add_f32 v[{Nn}:{Nn+1}], v[{Nn}:{Nn+1}], v[{Nn+2}:{Nn+3}]")
    o(f"    v_add_f32 v{Dd}, v{Dd}, v{Dd+1}")
    o(f"    v_rcp_f32 v{Dd}, v{Dd}")
    o(f"    v_add_f32 v{Nn}, v{Nn}, v{Nn+1}")
    o(f"    v_fma_f32 v{Nn}, v{Nn}, v{Dd}, v{V_XU}")
    o(f"    v_max_f32 v{Nn}, 0, v{Nn}")
    o(f"    v_add_f32 v{Nn}, v{Nn}, v{V_XU+1}")
    o(f"    v_cvt_pk_bf16_f32 v{Nn}, v{Nn}, v{Nn}")
    o(f"    ds_write_b16 v{T}, v{Nn} offset:{L_UX}")

def process_simple(tag, sn):
    o(f"    s_mul_i32 s72, s{S_CNODE}, {2 * SN}")
    o(f"    v_add_u32 v{V_OADDR}, s72, v{V_OB}")
    o(f"    s_lshl_b32 s72, s72, 2")
    o(f"    v_add_u32 v{V_EADDR}, s72, v{V_EB}")
    for s in range(4):
        o(f"    v_mov_b32 v{V_Q+2*s+1}, v{V_LOFF0}")
    o(f"K2_loop{tag}:")
    for s in range(4):
        o(f"    ds_read_u16 v{V_Q+2*s}, v{V_OADDR} offset:{2*s}")
    o("    s_mov_b64 exec, s[40:41]")
    for s in range(4):
        o(f"    ds_read_b64 v[{V_E+2*s}:{V_E+2*s+1}], v{V_EADDR} offset:{8*s}")
    o("    s_mov_b64 exec, -1")
    o("    s_waitcnt lgkmcnt(4)")
    for s in range(4):
        o(f"    buffer_load_dwordx4 v[{V_L+4*s}:{V_L+4*s+3}], v[{V_Q+2*s}:{V_Q+2*s+1}], s[24:27], 0 idxen offen")
    o(f"    v_add_u32 v{V_OADDR}, 8, v{V_OADDR}")
    o(f"    v_add_u32 v{V_EADDR}, 32, v{V_EADDR}")
    o("    s_waitcnt vmcnt(0) lgkmcnt(0)")
    for s in range(4):
        M1(s, 0)
        o("    s_nop 5")
        M2(s, 0)
        o("    s_nop 7")
        Va(0)
        Vb(s, 0)
        o(f"    s_sub_u32 s{sn}, s{sn}, 1")
        o(f"    s_cmp_eq_u32 s{sn}, 0")
        o(f"    s_cbranch_scc1 K2_pdone{tag}")
    o(f"    s_branch K2_loop{tag}")
    o(f"K2_pdone{tag}:")

TL = "tl" in FLAGS
def stamp(i):
    if not TL: return
    o("    s_waitcnt lgkmcnt(0)")
    o(f"    s_memrealtime s[{82+2*i}:{83+2*i}]")
    o("    s_waitcnt lgkmcnt(0)")
XS = dict((t.split(":")[0], int(t.split(":")[1])) for t in os.environ.get("XS", "karg:5,T:1,bar1:2,placed:3,bar2:4").split(","))
def xs(name):
    if name in XS: stamp(XS[name])
def stamp_flush():
    if not TL: return
    o("    s_waitcnt vmcnt(0) lgkmcnt(0)")
    o("    s_memrealtime s[94:95]")
    o("    s_memtime s[96:97]")
    o("    s_waitcnt lgkmcnt(0)")
    srd(20, 10, 11, 0x100000, 0x4000000)
    o("    s_lshl_b32 s98, s2, 3")
    o("    s_add_u32 s98, s98, s48")
    o("    s_lshl_b32 s98, s98, 6")
    for i in range(8):
        o(f"    v_mov_b32 v{i}, s{80+2*i}")
    o("    v_mov_b32 v8, s96")
    o("    s_getreg_b32 s99, hwreg(HW_REG_HW_ID)")
    o("    s_getreg_b32 s100, hwreg(HW_REG_XCC_ID)")
    o("    v_mov_b32 v9, s99")
    o("    v_mov_b32 v10, s100")
    o("    v_mov_b32 v11, 0")
    o("    v_mov_b32 v12, 0")
    o("    s_mov_b64 exec, 1")
    o("    buffer_store_dwordx4 v[0:3], v12, s[20:23], s98 offen")
    o("    buffer_store_dwordx4 v[4:7], v12, s[20:23], s98 offen offset:16")
    o("    buffer_store_dwordx4 v[8:11], v12, s[20:23], s98 offen offset:32")
    o("    s_mov_b64 exec, -1")

def lds_fill(base, nbytes, vdata):
    full = nbytes // 8192
    for k in range(full):
        o(f"    ds_write_b128 v10, v[{vdata}:{vdata+3}] offset:{base + 8192 * k}")
    rem = nbytes - full * 8192
    if rem:
        o(f"    v_cmp_gt_u32 vcc, {rem // 16}, v0")
        o("    s_and_saveexec_b64 s[44:45], vcc")
        o(f"    ds_write_b128 v10, v[{vdata}:{vdata+3}] offset:{base + 8192 * full}")
        o("    s_mov_b64 exec, s[44:45]")

def k2_full():
    o(".globl gk2_kernel")
    o(".p2align 8")
    o(".type gk2_kernel,@function")
    o("gk2_kernel:")
    if "k2empty" in FLAGS:
        o("    s_endpgm")
    o(f"    s_cmp_ge_u32 s2, {2 * NB}")
    o("    s_cbranch_scc1 K2_done0")
    if TL:
        o("    s_memtime s[80:81]")
        stamp(0)
    if "noprio" not in FLAGS:
        o("    s_setprio 3")
    o("    s_load_dwordx2 s[4:5], s[0:1], 0")
    o("    s_load_dwordx2 s[8:9], s[0:1], 72")
    o("    s_load_dwordx2 s[10:11], s[0:1], 88")
    o("    s_and_b32 s46, s2, 1")
    o("    s_bfe_u32 s47, s2, 0x20001")
    o("    s_mul_i32 s47, s47, 95")
    o("    s_lshr_b32 s48, s2, 3")
    o("    s_add_u32 s47, s47, s48")
    NRC = 5
    o("    v_and_b32 v1, 63, v0")
    o("    v_lshrrev_b32 v2, 6, v0")
    o("    v_and_b32 v3, 15, v0")
    o("    v_bfe_u32 v4, v0, 4, 2")
    o("    v_readfirstlane_b32 s48, v2")
    o("    v_lshrrev_b32 v6, 2, v0")
    o("    v_lshlrev_b32 v7, 2, v6")
    o("    v_lshlrev_b32 v10, 4, v0")
    o("    v_lshlrev_b32 v8, 4, v1")
    o("    s_lshl_b32 s49, s47, 9")
    o(f"    s_mul_i32 s50, s47, {NPB}")
    o("    v_cmp_gt_u32 s[44:45], 16, v0")
    o("    s_lshl_b32 s59, s50, 8")
    o("    s_add_u32 s60, s59, 8192")
    o("    s_and_b32 s56, s48, 1")
    o("    s_lshr_b32 s57, s48, 1")
    o("    s_lshl_b32 s58, s56, 1")
    o("    s_add_u32 s58, s58, s46")
    o("    s_lshl_b32 s58, s58, 2")
    o("    s_add_u32 s58, s58, s57")
    o("    s_lshl_b32 s58, s58, 12")
    SL = [int(x) for x in os.environ.get("SL", "0,0").split(",")]
    if SL[0]:
        o("    s_cmp_lt_u32 s2, 256")
        o("    s_cbranch_scc1 K2_nsl")
        o(f"    s_sleep {SL[0]}")
        o("    s_cmp_lt_u32 s2, 512")
        o("    s_cbranch_scc1 K2_nsl")
        o(f"    s_sleep {SL[1]}")
        o("K2_nsl:")
    o("    s_waitcnt lgkmcnt(0)")
    xs("karg")
    srd(12, 10, 11, NB * W * 4, OFF_T)
    o("    buffer_load_dword v5, v7, s[12:15], s49 offen")
    srd(36, 4, 5, N * 256)
    o("    buffer_load_dwordx4 v[32:35], v10, s[36:39], s59 offen")
    srd(28, 10, 11, 65536 + 1024, OFF_FR)
    o("    s_cmp_lg_u32 s48, 0")
    o("    s_cbranch_scc1 K2_nx2")
    o("    s_mov_b64 exec, s[44:45]")
    o("    buffer_load_dwordx4 v[36:39], v10, s[36:39], s60 offen")
    o("    s_mov_b64 exec, -1")
    o("K2_nx2:")
    o("    s_cmp_lg_u32 s48, 7")
    o("    s_cbranch_scc1 K2_nwc")
    o("    s_lshl_b32 s61, s46, 9")
    o("    s_add_u32 s61, s61, 65536")
    o("    v_lshlrev_b32 v9, 3, v1")
    o("    buffer_load_dwordx2 v[36:37], v9, s[28:31], s61 offen")
    o("K2_nwc:")
    FR = 16
    FRE = "frlate" not in FLAGS
    def frloads():
        for s in range(4):
            o(f"    buffer_load_dwordx4 v[{FR + 4 * s}:{FR + 4 * s + 3}], v8, s[28:31], s58 offen offset:{1024 * s}")
    if FRE: frloads()
    for r in range(12, 16):
        o(f"    v_mov_b32 v{r}, 0")
    for r in range(64, 68):
        o(f"    v_mov_b32 v{r}, {hex(DUMMY_PAT)}")
    o("    v_cmp_gt_u32 vcc, 32, v0")
    o("    s_and_saveexec_b64 s[44:45], vcc")
    o("    ds_write_b128 v10, v[12:15] offset:0")
    o("    s_and_b64 exec, exec, 15")
    o("    v_lshlrev_b32 v11, 2, v0")
    o(f"    v_mov_b32 v9, {hex(EPS4)}")
    o(f"    ds_write_b32 v11, v9 offset:{L_ZERO + 16}")
    o("    s_mov_b64 exec, s[44:45]")
    xs("ld")
    if "nofill" not in FLAGS:
        lds_fill(L_E, E_B, 12)
        lds_fill(L_OFFS, OFFS_B, 64)
    srd(16, 10, 11, W * CHS, OFF_REC)
    o("    v_and_b32 v2, 3, v0")
    if "tlbA" in FLAGS:
        o(f"    v_mul_u32_u24 v6, 516, v6")
    elif "tlbB" in FLAGS:
        o(f"    v_mul_u32_u24 v6, 516, v6")
        o("    s_and_b32 s61, s2, 63")
        o(f"    s_mul_i32 s61, s61, {12 * 5504}")
        o("    v_add_u32 v6, s61, v6")
    else:
        o(f"    v_mul_u32_u24 v6, {CHS}, v6")
    xs("init")
    nf = 4 if FRE else 0
    o("    s_add_u32 s61, s48, 1")
    o("    s_and_b32 s61, s61, 6")
    o("    s_cmp_eq_u32 s61, 0")
    o("    s_cbranch_scc1 K2_tw2")
    o(f"    s_waitcnt vmcnt({1 + nf})")
    o("K2_tw2:")
    o(f"    s_waitcnt vmcnt({2 + nf})")
    xs("T")
    o("    v_lshrrev_b32 v11, 16, v5")
    if "tlbB" in FLAGS:
        o("    v_and_b32 v11, 15, v11")
    o("    v_and_b32 v5, 0xffff, v5")
    o(f"    v_add_u32 v7, v11, v2")
    o("    v_mad_u32_u24 v7, v7, 12, v6")
    RB = [48 + 4 * i for i in range(NRC)]
    MK = [68 + 2 * i for i in range(NRC)]
    for i in range(NRC):
        o(f"    v_add_u32 v11, {4 * i}, v2")
        o(f"    v_cmp_gt_u32 s[{MK[i]}:{MK[i] + 1}], v5, v11")
    ORD = [4, 3, 0, 1, 2]
    for i in ORD:
        o(f"    s_mov_b64 exec, s[{MK[i]}:{MK[i] + 1}]")
        if i >= 3:
            o(f"    s_cbranch_execz K2_nr{i}")
        o(f"    buffer_load_dwordx3 v[{RB[i]}:{RB[i] + 2}], v7, s[16:19], 0 offen offset:{48 * i}")
        if i >= 3:
            o(f"K2_nr{i}:")
    o("    s_mov_b64 exec, -1")
    if not FRE: frloads()
    o("    s_mov_b32 s24, s10")
    o("    s_or_b32 s25, s11, 0x2000000")
    o(f"    s_movk_i32 s26, {DUMMY_ROW + 2}")
    o("    s_mov_b32 s27, 0x00020000")
    srd(52, 8, 9, N * 256)
    o("    s_mov_b32 s40, 0x22221111")
    o("    s_mov_b32 s41, 0x88884444")
    o(f"    s_movk_i32 s42, {CAP}")
    o(f"    s_movk_i32 s{S_2SN}, {2 * SN}")
    o(f"    v_lshlrev_b32 v{V_FOFF}, 3, v3")
    o(f"    v_lshl_add_u32 v{V_FOFF}, v4, 1, v{V_FOFF}")
    o("    s_lshl_b32 s62, s46, 8")
    o(f"    s_sub_u32 s78, {L_A}, s62")
    o(f"    v_lshlrev_b32 v{V_LOFF0}, 4, v3")
    o(f"    v_lshl_add_u32 v{V_SCRR}, v4, 2, v{V_LOFF0}")
    o(f"    v_add_u32 v{V_LOFF0}, s62, v{V_LOFF0}")
    o(f"    v_lshlrev_b32 v{V_OB}, 5, v4")
    o(f"    v_add_u32 v{V_OB}, {L_OFFS}, v{V_OB}")
    o("    v_lshrrev_b32 v11, 2, v3")
    o(f"    v_lshlrev_b32 v{V_EB}, 7, v11")
    o(f"    v_add_u32 v{V_EB}, {L_E}, v{V_EB}")
    o("    s_lshl_b32 s62, s48, 10")
    o(f"    s_add_u32 s62, s62, {L_SCR}")
    o(f"    v_add_u32 v{V_SCRW}, s62, v8")
    o(f"    v_add_u32 v{V_SCRR}, s62, v{V_SCRR}")
    o("    v_and_b32 v9, 3, v3")
    o("    v_mov_b32 v68, 0x3f80")
    o("    v_cmp_eq_u32 s[44:45], v4, v11")
    for t in range(4):
        o(f"    v_cmp_eq_u32 vcc, {t}, v9")
        o("    s_and_b64 s[62:63], s[44:45], vcc")
        o("    s_nop 0")
        o(f"    v_cndmask_b32 v{V_S + t}, 0, v68, s[62:63]")
    o(f"    s_sub_u32 s51, {N}, s50")
    o(f"    s_min_u32 s51, s51, {NPB}")
    o(f"    s_mov_b32 s62, {hex(NLOG2E)}")
    o("    s_mov_b32 s61, s56")
    o("    s_sub_u32 s64, 1, s56")
    o("    s_add_u32 s66, s64, 3")
    o("    s_add_u32 s64, s64, 1")
    o("    s_lshl_b32 s64, s57, s64")
    o("    s_cmp_eq_u32 s56, 0")
    o(f"    s_cselect_b32 s63, {L_A}, {L_UX}" if False else f"    s_mov_b32 s63, {L_UX}")
    o(f"    s_cselect_b32 s63, {L_A}, s63")
    o("    s_add_u32 s63, s63, s64")
    o("    s_mov_b32 s58, 0x00ff00ff")
    o("    s_lshl_b32 s64, s46, 3")
    o("    s_lshl_b32 s58, s58, s64")
    o("    s_mov_b32 s59, s58")
    o(f"    s_mov_b32 s{S_ONE}, 1.0")
    o(f"    s_mov_b32 s{S_ONE+1}, 1.0")
    o("    v_and_b32 v11, 0x1f0, v0")
    o("    v_add_u32 v11, v11, v10")
    o("    v_cmp_gt_u32 s[44:45], 16, v0")
    o("    v_and_b32 v6, 0xffffff7f, v10")
    o("    v_lshlrev_b32 v8, 10, v4")
    o("    v_lshl_add_u32 v8, v3, s66, v8")
    o("    v_add_u32 v8, s63, v8")
    o(f"    v_mul_u32_u24 v9, {XSTR}, v3")
    o("    v_lshl_add_u32 v9, v4, 4, v9")
    o("    v_mov_b32 v69, 1")
    xs("const")
    o(f"    s_waitcnt vmcnt(7)")
    xs("x")
    o(f"    ds_write_b128 v11, v[32:35] offset:{L_X}")
    o("    s_mov_b64 exec, s[58:59]")
    o(f"    ds_write_b128 v6, v[32:35] offset:{L_UX + 128}")
    o("    s_mov_b64 exec, -1")
    o("    s_cmp_lg_u32 s48, 0")
    o("    s_cbranch_scc1 K2_nx3")
    o("    s_mov_b64 exec, s[44:45]")
    o(f"    ds_write_b128 v10, v[36:39] offset:{L_X + 32 * XSTR}")
    o("    s_and_b64 exec, exec, s[58:59]")
    o(f"    ds_write_b128 v6, v[36:39] offset:{L_UX + 128 + 32 * 256}")
    o("    s_mov_b64 exec, -1")
    o("K2_nx3:")
    o("    s_cmp_lg_u32 s48, 7")
    o("    s_cbranch_scc1 K2_nwc3")
    o("    v_lshlrev_b32 v11, 3, v1")
    o(f"    ds_write_b64 v11, v[36:37] offset:{L_WC}")
    o("K2_nwc3:")
    o("    s_waitcnt lgkmcnt(0)")
    o("    s_barrier")
    xs("bar1")
    XA = 32
    D = 12
    def xreads(tl):
        for s in range(4):
            o(f"    ds_read_b128 v[{XA + 4 * s}:{XA + 4 * s + 3}], v9 offset:{L_X + 64 * s + 16 * XSTR * tl}")
    def tile(tl):
        for s in range(4):
            c = "0" if s == 0 else f"v[{D}:{D + 3}]"
            o(f"    v_mfma_f32_16x16x32_bf16 v[{D}:{D + 3}], v[{XA + 4 * s}:{XA + 4 * s + 3}], v[{FR + 4 * s}:{FR + 4 * s + 3}], {c}")
        if tl < 2:
            xreads(tl + 1)
            o("    s_nop 3")
        else:
            o("    s_nop 7")
        nj = 4 if tl < 2 else 1
        if tl == 2:
            o("    s_mov_b64 exec, 0xffff")
        o("    s_cmp_lg_u32 s61, 0")
        o(f"    s_cbranch_scc1 K2_tu{tl}")
        for j in range(nj):
            o(f"    v_mul_f32 v{D + j}, s62, v{D + j}")
        for j in range(nj):
            o(f"    ds_write_b32 v8, v{D + j} offset:{4096 * tl + 256 * j}")
        o(f"    s_branch K2_te{tl}")
        o(f"K2_tu{tl}:")
        for j in range(0, nj, 2):
            o(f"    v_cvt_pk_bf16_f32 v{D + j}, v{D + j}, v{D + j + 1}")
        for j in range(nj):
            o(f"    ds_write_b16{'_d16_hi' if j & 1 else ''} v8, v{D + (j & ~1)} offset:{4096 * tl + 256 * j}")
        o(f"K2_te{tl}:")
        if tl == 2:
            o("    s_mov_b64 exec, -1")
    def ranks(nyoung):
        for n_, i in enumerate(ORD):
            if i < 3:
                o(f"    s_waitcnt vmcnt({2 - i + nyoung})")
            o(f"    s_mov_b64 exec, s[{MK[i]}:{MK[i] + 1}]")
            o(f"    v_lshrrev_b32 v{10 + (n_ & 1)}, 16, v{RB[i] + 2}")
            o(f"    ds_add_rtn_u32 v{RB[i] + 3}, v{10 + (n_ & 1)}, v69 offset:{L_CNT}")
        o("    s_mov_b64 exec, -1")
    def places(counted):
        for n_, i in enumerate(ORD):
            if counted:
                o(f"    s_waitcnt lgkmcnt({NRC - 1 - n_ + 2 * n_})")
            o(f"    s_mov_b64 exec, s[{MK[i]}:{MK[i] + 1}]")
            o(f"    v_cmp_gt_u32 vcc, s42, v{RB[i] + 3}")
            o("    s_and_b64 exec, exec, vcc")
            o(f"    v_lshrrev_b32 v11, 16, v{RB[i] + 2}")
            place(RB[i], RB[i] + 2, RB[i] + 3, 11, 10)
        o("    s_mov_b64 exec, -1")
    xreads(0)
    if FRE:
        if "tfirst" in FLAGS:
            o("    s_waitcnt vmcnt(3) lgkmcnt(0)")
            xs("fr")
            tile(0)
            o("    s_waitcnt lgkmcnt(4)")
            tile(1)
            xs("t1")
            if "rec" in XS:
                o("    s_waitcnt vmcnt(0)")
            xs("rec")
            ranks(0)
            o(f"    s_waitcnt lgkmcnt({4 + NRC})")
            tile(2)
            o("    s_waitcnt lgkmcnt(1)")
            xs("atom")
            places(False)
        else:
            o("    s_waitcnt vmcnt(3) lgkmcnt(0)")
            tile(0)
            ranks(0)
            o(f"    s_waitcnt lgkmcnt({4 + NRC})")
            tile(1)
            o("    s_waitcnt lgkmcnt(8)")
            places(False)
            o("    s_waitcnt lgkmcnt(14)")
            tile(2)
        xs("placed")
    else:
        ranks(4)
        places(True)
        xs("placed")
        o("    s_waitcnt vmcnt(0)")
        tile(0)
        o("    s_waitcnt lgkmcnt(4)")
        tile(1)
        o("    s_waitcnt lgkmcnt(4)")
        tile(2)
    o(f"    v_add_u32 v11, {4 * NRC}, v2")
    o(f"    v_add_u32 v7, {48 * NRC}, v7")
    o("K2_rem:")
    o("    v_cmp_gt_u32 vcc, v5, v11")
    o("    s_and_b64 exec, exec, vcc")
    o("    s_cbranch_execz K2_rem_end")
    o("    buffer_load_dwordx3 v[48:50], v7, s[16:19], 0 offen")
    o("    s_waitcnt vmcnt(0)")
    o("    v_lshrrev_b32 v10, 16, v50")
    o(f"    ds_add_rtn_u32 v51, v10, v69 offset:{L_CNT}")
    o("    s_waitcnt lgkmcnt(0)")
    o("    s_mov_b64 s[44:45], exec")
    o("    v_cmp_gt_u32 vcc, s42, v51")
    o("    s_and_b64 exec, exec, vcc")
    place(48, 50, 51, 10, 12)
    o("    s_mov_b64 exec, s[44:45]")
    o("    v_add_u32 v11, 4, v11")
    o("    v_add_u32 v7, 48, v7")
    o("    s_branch K2_rem")
    o("K2_rem_end:")
    o("    s_mov_b64 exec, -1")
    o("    s_mov_b32 s75, s78")
    o("    v_lshlrev_b32 v8, 2, v1")
    o(f"    s_mov_b64 s[{S_FIFO}:{S_FIFO+1}], 0")
    o(f"    s_mov_b32 s{S_FSH}, 0")
    o(f"    v_mov_b32 v{V_OADDR}, v{V_OB}")
    o(f"    v_mov_b32 v{V_EADDR}, v{V_EB}")
    o(f"    v_mov_b32 v{V_LOFF}, v{V_LOFF0}")
    o(f"    v_mov_b32 v{V_ZERO}, 0")
    o("    s_waitcnt lgkmcnt(0)")
    o("    s_barrier")
    xs("bar2")
    if "noprio" not in FLAGS and PR[0][1] != 3:
        o(f"    s_setprio {PR[0][1]}")
    o(f"    ds_read_b32 v{V_CNT}, v8 offset:{L_CNT}")
    ticket()
    o("    v_lshlrev_b32 v8, 1, v8")
    o(f"    ds_read_b64 v[{V_WC}:{V_WC + 1}], v8 offset:{L_WC}")
    o(f"    ds_read_b128 v[{V_E}:{V_E + 3}], v{V_ZERO} offset:{L_ZERO}")
    o(f"    ds_read_b128 v[{V_E + 4}:{V_E + 7}], v{V_ZERO} offset:{L_ZERO}")
    o(f"    ds_read_b64 v[{V_XU}:{V_XU + 1}], v{V_ZERO} offset:{L_ZERO}")
    zero_acc()
    o("    s_waitcnt lgkmcnt(7)")
    o(f"    v_add_u32 v8, 3, v{V_CNT}")
    o(f"    v_cmp_lt_u32 vcc, s42, v{V_CNT}")
    o("    v_lshrrev_b32 v8, 2, v8")
    o("    v_max_u32 v8, 1, v8")
    o("    v_cndmask_b32 v8, v8, 33, vcc")
    o(f"    v_lshl_or_b32 v{V_CNT}, v8, 6, v1")
    o("    s_waitcnt lgkmcnt(0)")
    if "k2pro" in FLAGS:
        o("    s_branch K2_done")
    lswitch(0)
    o(f"    ds_read_u16 v{V_IDX}, v{V_OADDR}")
    peek_a()
    for j in range(R):
        lissue(j)
    cpop("K2_slowscan")
    if "bench" in FLAGS:
        o(f"    s_movk_i32 s{S_CREM}, 2000")
        o(f"    s_mov_b32 s{S_LREM}, 0x7fffffff")
        o(f"    s_mov_b64 s[{S_FIFO}:{S_FIFO+1}], 63")
        o(f"    s_mov_b32 s{S_FSH}, 12")
    o(f"    s_waitcnt vmcnt({R - 1})")
    M1(0, 0)
    o("    s_nop 5")
    M2(0, 0)
    o("    s_nop 3")
    o(f"    s_sub_u32 s{S_CREM}, s{S_CREM}, 2")
    o("    s_cbranch_scc0 K2_step0")
    peek_a()
    o("    s_waitcnt lgkmcnt(0)")
    for j in range(R):
        jn = (j + 1) % R
        g, gn = j & 1, (j + 1) & 1
        o(f"K2_step{j}:")
        o(f"    s_waitcnt vmcnt({R - 2})")
        M1(jn, gn)
        Va(g)
        M2(jn, gn)
        Vb(j, g)
        lissue(j)
        o(f"    s_sub_u32 s{S_CREM}, s{S_CREM}, 1")
        o(f"    s_cmp_lt_i32 s{S_CREM}, 0")
        o(f"    s_cbranch_scc1 K2_rare{j}")
        if jn == 0:
            o("    s_branch K2_step0")
        def ool(j=j, jn=jn, g=g):
            o(f"K2_rare{j}:")
            o(f"    s_cmp_eq_i32 s{S_CREM}, -1")
            o(f"    s_cbranch_scc1 K2_pk{j}")
            o(f"    s_cmp_lg_u32 s{S_SKIP}, 0")
            o(f"    s_cbranch_scc1 K2_nf{j}")
            finalize(g)
            o(f"K2_cp{j}:")
            cpop("K2_slowscan")
            o(f"    s_sub_u32 s{S_CREM}, s{S_CREM}, 2")
            o(f"    s_cbranch_scc0 K2_step{jn}")
            o(f"K2_pk{j}:")
            peek_a()
            o("    s_waitcnt lgkmcnt(0)")
            o(f"    s_branch K2_step{jn}")
            o(f"K2_nf{j}:")
            zero_acc()
            o("    s_waitcnt lgkmcnt(0)")
            o(f"    s_branch K2_cp{j}")
        OOL.append(ool)
    i = 0
    while i < len(OOL):
        OOL[i]()
        i += 1
    o("K2_slowscan:")
    o("    s_waitcnt vmcnt(0) lgkmcnt(0)")
    o(f"    v_cmp_lt_u32 vcc, 0x7ff, v{V_CNT}")
    o("    s_cmp_eq_u64 vcc, 0")
    o("    s_cbranch_scc1 K2_done")
    o("    s_mov_b64 s[78:79], vcc")
    o("K2_snode:")
    o("    s_cmp_eq_u64 s[78:79], 0")
    o("    s_cbranch_scc1 K2_done")
    o(f"    s_ff1_i32_b64 s{S_CNODE}, s[78:79]")
    o(f"    s_bitset0_b64 s[78:79], s{S_CNODE}")
    o(f"    s_and_b32 s65, s{S_CNODE}, 7")
    o("    s_cmp_lg_u32 s65, s48")
    o("    s_cbranch_scc1 K2_snode")
    read_a(S_CNODE)
    zero_acc()
    o("    s_waitcnt lgkmcnt(0)")
    o(f"    s_lshl_b32 s61, s{S_CNODE}, 2")
    o("    s_mov_b32 s68, 0")
    o("K2_sseg:")
    o(f"    s_cmp_ge_u32 s68, {W}")
    o("    s_cbranch_scc1 K2_sfin")
    o("    s_lshl_b32 s69, s68, 2")
    o("    s_add_u32 s69, s69, s49")
    o("    s_buffer_load_dword s70, s[12:15], s69")
    o("    s_waitcnt lgkmcnt(0)")
    o("    s_lshr_b32 s71, s70, 16")
    o("    s_and_b32 s70, s70, 0xffff")
    o(f"    s_mul_i32 s67, s68, {CHS}")
    o("    s_add_u32 s68, s68, 1")
    o("    s_mov_b32 s73, 0")
    o("K2_sgrp:")
    o("    s_cmp_ge_u32 s73, s70")
    o("    s_cbranch_scc1 K2_sseg")
    G = V_G
    o(f"    v_mbcnt_lo_u32_b32 v{G}, -1, 0")
    o(f"    v_mbcnt_hi_u32_b32 v{G}, -1, v{G}")
    o(f"    v_add_u32 v{G+1}, s73, v{G}")
    o("    s_add_u32 s74, s71, s73")
    o(f"    v_add_u32 v{G+2}, s74, v{G}")
    o(f"    v_mul_u32_u24 v{G+2}, 12, v{G+2}")
    o(f"    v_cmp_gt_u32 vcc, s70, v{G+1}")
    o("    s_add_u32 s73, s73, 64")
    o(f"    v_mov_b32 v{V_L+2}, 0x1fc0000")
    o("    s_mov_b64 exec, vcc")
    o(f"    buffer_load_dwordx3 v[{V_L}:{V_L+2}], v{G+2}, s[16:19], s67 offen")
    o("    s_mov_b64 exec, -1")
    o(f"    s_mul_i32 s65, s{S_CNODE}, {2 * SN}")
    o(f"    v_lshlrev_b32 v{G+1}, 1, v{G}")
    o(f"    v_add_u32 v{G+1}, s65, v{G+1}")
    o(f"    v_lshlrev_b32 v{G+2}, 2, v{G+1}")
    o(f"    v_mov_b32 v{G+3}, {hex(DUMMY_ROW)}")
    o(f"    v_mov_b32 v{G+4}, 0")
    o(f"    v_mov_b32 v{G+5}, 0")
    o(f"    ds_write_b16 v{G+1}, v{G+3} offset:{L_OFFS}")
    o(f"    ds_write_b64 v{G+2}, v[{G+4}:{G+5}] offset:{L_E}")
    o("    s_waitcnt vmcnt(0)")
    o(f"    v_lshrrev_b32 v{G+1}, 16, v{V_L+2}")
    o(f"    v_cmp_eq_u32 vcc, s61, v{G+1}")
    o("    s_bcnt1_i32_b64 s64, vcc")
    o("    s_cmp_eq_u32 s64, 0")
    o("    s_cbranch_scc1 K2_sgrp")
    o(f"    v_mbcnt_lo_u32_b32 v{V_L+3}, vcc_lo, 0")
    o(f"    v_mbcnt_hi_u32_b32 v{V_L+3}, vcc_hi, v{V_L+3}")
    o("    s_mov_b64 exec, vcc")
    place(V_L, V_L + 2, V_L + 3, G + 1, G + 2)
    o("    s_mov_b64 exec, -1")
    o("    s_add_u32 s64, s64, 3")
    o("    s_lshr_b32 s64, s64, 2")
    o("    s_waitcnt lgkmcnt(0)")
    process_simple("s", 64)
    o("    s_branch K2_sgrp")
    o("K2_sfin:")
    finalize(0)
    o("    s_branch K2_snode")
    o("K2_done:")
    o("    s_waitcnt lgkmcnt(0)")
    o("    s_barrier")
    o("    v_mbcnt_lo_u32_b32 v0, -1, 0")
    o("    v_mbcnt_hi_u32_b32 v0, -1, v0")
    o("    s_lshl_b32 s62, s48, 6")
    o("    v_add_u32 v0, s62, v0")
    o("    s_lshl_b32 s62, s51, 3")
    o("    v_cmp_gt_u32 vcc, s62, v0")
    o("    s_and_b64 exec, exec, vcc")
    o("    s_cbranch_execz K2_done1")
    o("    v_lshrrev_b32 v2, 3, v0")
    o("    v_and_b32 v3, 7, v0")
    o("    v_lshlrev_b32 v2, 8, v2")
    o("    v_lshl_add_u32 v2, v3, 4, v2")
    o(f"    ds_read_b128 v[4:7], v2 offset:{L_UX}")
    o("    s_lshl_b32 s62, s50, 8")
    o("    s_lshl_b32 s63, s46, 7")
    o("    s_add_u32 s62, s62, s63")
    o("    s_waitcnt lgkmcnt(0)")
    o("    buffer_store_dwordx4 v[4:7], v2, s[52:55], s62 offen")
    o("K2_done1:")
    o("    s_mov_b64 exec, -1")
    stamp_flush()
    o("K2_done0:")
    o("    s_endpgm")

def desc(name, vgpr, sgpr):
    o(f".amdhsa_kernel {name}")
    o(f"  .amdhsa_next_free_vgpr {vgpr}")
    o(f"  .amdhsa_next_free_sgpr {sgpr}")
    o(f"  .amdhsa_accum_offset {(vgpr + 3) // 4 * 4}")
    o("  .amdhsa_group_segment_fixed_size 0")
    o("  .amdhsa_kernarg_size 96")
    o("  .amdhsa_user_sgpr_count 2")
    o("  .amdhsa_user_sgpr_kernarg_segment_ptr 1")
    o("  .amdhsa_system_sgpr_workgroup_id_x 1")
    o(".end_amdhsa_kernel")

hdr()
k1()
k2_full()
o('.section .rodata,"a"')
o(".p2align 6")
desc("gk1_kernel", 256 if TL1 else 240, 102)
o(".p2align 6")
desc("gk2_kernel", K2_VGPR, 102 if TL else 80)
path = sys.argv[1] if len(sys.argv) > 1 else f"cdna_kernels/{NAME}.s"
open(path, "w").write("\n".join(out) + "\n")
print("wrote", path, "lines", len(out), "K2 LDS", K2_LDS)
```
